```python
import torch

def _softmax(x, axis=-1):
    return torch.softmax(x, dim=axis)
def _gelu(x):
    return torch.nn.functional.gelu(x, approximate="tanh")
def _silu(x):
    return torch.nn.functional.silu(x)
def _sigmoid(x):
    return torch.sigmoid(x)
def _layernorm(x, axis=-1, eps=1e-5):
    m = x.mean(dim=axis, keepdim=True)
    v = x.var(dim=axis, keepdim=True, unbiased=False)
    return (x - m) / torch.sqrt(v + eps)
def _scatter_add(tgt, idx, src, axis=0):
    return tgt.clone().index_add_(axis, idx, src)
def _segment_sum(src, seg, n):
    out = torch.zeros((n,) + src.shape[1:], dtype=src.dtype)
    return out.index_add_(0, seg, src)
def _pad(x, pw):
    flat = tuple(v for pair in reversed(pw) for v in pair)
    return torch.nn.functional.pad(x, flat)

kernel_name = 'sequential_preLN__sliding_block_cached__glu_gated_geglu__decode'

def setup_inputs():

    _w = (lambda a: (lambda t: t.to(torch.bfloat16) if t.is_floating_point() else t)(torch.as_tensor(a)))
    def _A_setup():
        B, Sq, D = 1, 1, 448
        Hq, Hkv, Sk, Dh = 16, 8, 16384, 256
        assert Hq % Hkv == 0, (Hq, Hkv)
        return {
            "x": _w((lambda *s: torch.randn(*s, dtype=torch.bfloat16) * 0.05)(B, Sq, D)),
            "k_cache": _w((lambda *s: torch.randn(*s, dtype=torch.bfloat16) * 1.6)(B, Hkv, Sk, Dh)),
            "v_cache": _w((lambda *s: torch.randn(*s, dtype=torch.bfloat16) * 0.8)(B, Hkv, Sk, Dh)),
            "wq": _w((lambda *s: torch.randn(*s, dtype=torch.bfloat16) * 1.6)(D, Hq * Dh) * (D ** -0.5)),
            "wo": _w((lambda *s: torch.randn(*s, dtype=torch.bfloat16) * 0.8)(Hq * Dh, D) * ((Hq * Dh) ** -0.5)),
        }
    _A_in = _A_setup()

    def _B_setup():
        B, S, Dm, Df = 1, 1, 448, 1792
        return {
            "x": _w((lambda *s: torch.randn(*s, dtype=torch.bfloat16) * 0.05)(B, S, Dm)),
            "w_gate": _w((lambda *s: torch.randn(*s, dtype=torch.bfloat16) * 0.8)(Dm, Df) * (Dm ** -0.5)),
            "w_up": _w((lambda *s: torch.randn(*s, dtype=torch.bfloat16) * 0.8)(Dm, Df) * (Dm ** -0.5)),
            "w_down": _w((lambda *s: torch.randn(*s, dtype=torch.bfloat16) * 0.8)(Df, Dm) * (Df ** -0.5)),
        }
    _B_in = _B_setup()

    return {
        "A_x": _A_in["x"],
        "A_k_cache": _A_in["k_cache"],
        "A_v_cache": _A_in["v_cache"],
        "A_wq": _A_in["wq"],
        "A_wo": _A_in["wo"],
        "B_x": _B_in["x"],
        "B_w_gate": _B_in["w_gate"],
        "B_w_up": _B_in["w_up"],
        "B_w_down": _B_in["w_down"],
    }

def reference(A_x, A_k_cache, A_v_cache, A_wq, A_wo, B_x, B_w_gate, B_w_up, B_w_down):
    def _A_ref(x, k_cache, v_cache, wq, wo):
        B, Sq, D = x.shape
        Hq, Dh = 16, 256
        Hkv, Sk = k_cache.shape[1], k_cache.shape[2]
        W = min(4096, max(256, Sk // 4))
        rep = Hq // Hkv
        q = (lambda x, *d: x.permute(*d))((x @ wq).reshape(B, Sq, Hq, Dh), 0, 2, 1, 3)
        k = (lambda x, n, axis: torch.repeat_interleave(x, n, dim=axis))(k_cache[:, :, Sk - W:, :], rep, axis=1)
        v = (lambda x, n, axis: torch.repeat_interleave(x, n, dim=axis))(v_cache[:, :, Sk - W:, :], rep, axis=1)
        scores = torch.einsum("bhqd,bhkd->bhqk", q, k) * (Dh ** -0.5)
        p = _softmax(scores, axis=-1)
        o = torch.einsum("bhqk,bhkd->bhqd", p, v)
        return (lambda x, *d: x.permute(*d))(o, 0, 2, 1, 3).reshape(B, Sq, Hq * Dh) @ wo

    def _B_ref(x, w_gate, w_up, w_down):
        g = torch.einsum("bsd,df->bsf", x, w_gate)
        u = torch.einsum("bsd,df->bsf", x, w_up)
        h = _gelu(g) * u
        return torch.einsum("bsf,fd->bsd", h, w_down)

    x = A_x
    h = x + _A_ref(_layernorm(x, axis=-1), A_k_cache, A_v_cache, A_wq, A_wo)
    h2 = h + _B_ref(_layernorm(h, axis=-1), B_w_gate, B_w_up, B_w_down)
    return h2
```

```python
import re

TRANS = ("v_exp_f32", "v_log_f32", "v_rcp_f32", "v_rsq_f32", "v_sqrt_f32", "v_sin_f32", "v_cos_f32", "v_rcp_iflag_f32")

def v(i, n=1):
    return f"v{i}" if n == 1 else f"v[{i}:{i+n-1}]"
def s(i, n=1):
    return f"s{i}" if n == 1 else f"s[{i}:{i+n-1}]"

_REG = re.compile(r"^(v|s|a)(\d+)$|^(v|s|a)\[(\d+):(\d+)\]$")

def regs_of(tok):
    tok = tok.strip()
    neg = tok.lstrip("-")
    if neg.startswith("abs(") or neg.startswith("|"):
        neg = neg.replace("abs(", "").replace(")", "").replace("|", "")
    tok = neg
    if tok == "vcc":
        return {("s", "vcc_lo"), ("s", "vcc_hi")}
    if tok in ("vcc_lo", "vcc_hi"):
        return {("s", tok)}
    if tok == "exec":
        return {("s", "exec_lo"), ("s", "exec_hi")}
    if tok == "m0":
        return {("s", "m0")}
    m = _REG.match(tok)
    if not m:
        return set()
    if m.group(1):
        return {(m.group(1), int(m.group(2)))}
    return {(m.group(3), i) for i in range(int(m.group(4)), int(m.group(5)) + 1)}

class Ins:
    def __init__(self, text):
        self.text = text
        t = text.split(";")[0].strip()
        parts = t.split(None, 1)
        self.op = parts[0]
        rest = parts[1] if len(parts) > 1 else ""
        ops = []
        depth = 0; cur = ""
        for ch in rest:
            if ch == "[": depth += 1
            if ch == "]": depth -= 1
            if ch == "," and depth == 0:
                ops.append(cur.strip()); cur = ""
            else:
                cur += ch
        if cur.strip():
            ops.append(cur.strip())
        self.mods = ""
        if ops:
            last = ops[-1].split(None, 1)
            if len(last) > 1 and not last[0].endswith(":"):
                ops[-1] = last[0]; self.mods = last[1]
        self.ops = ops
        op = self.op
        self.is_mfma = op.startswith("v_mfma")
        self.is_valu = op.startswith("v_") and not self.is_mfma
        self.is_salu = op.startswith("s_")
        self.is_vmem = op.startswith("buffer_") or op.startswith("global_")
        self.is_ds = op.startswith("ds_")
        self.is_trans = any(op.startswith(x) for x in TRANS)
        self.is_dpp = "_dpp" in op or "quad_perm" in self.mods or "row_" in self.mods
        self.is_permlane = op.startswith("v_permlane")
        self.is_lane = op.startswith("v_readlane") or op.startswith("v_readfirstlane") or op.startswith("v_writelane")
        self.wr = set(); self.rd = set()
        R = [regs_of(o) for o in ops]
        if self.is_mfma:
            self.wr = R[0]; self.rd = R[1] | R[2] | R[3]; self.srcc = R[3]; self.srcab = R[1] | R[2]
            self.passes = 8 if "32x32" in op else 4
        elif self.is_permlane and "swap" in op:
            self.wr = R[0] | R[1]; self.rd = R[0] | R[1]
        elif self.is_valu:
            if op.startswith("v_cmp"):
                self.wr = R[0]; self.rd = set().union(*R[1:]) if len(R) > 1 else set()
            elif op.startswith(("v_add_co", "v_sub_co", "v_addc_co", "v_subb_co")):
                self.wr = R[0] | R[1]; self.rd = set().union(*R[2:])
            else:
                self.wr = R[0]; self.rd = set().union(*R[1:]) if len(R) > 1 else set()
                if op.startswith(("v_fmac", "v_dot2c", "v_writelane")) or self.is_dpp:
                    self.rd |= R[0]
                if op.startswith("v_cndmask") and len(R) == 3:
                    self.rd |= regs_of("vcc")
        elif self.is_ds:
            if op.startswith(("ds_read", "ds_bpermute", "ds_permute", "ds_swizzle")):
                self.wr = R[0]; self.rd = set().union(*R[1:]) if len(R) > 1 else set()
            else:
                self.rd = set().union(*R) if R else set()
        elif self.is_vmem:
            lds = " lds" in (" " + self.mods) or "load_lds" in op
            if "load" in op and not lds:
                self.wr = R[0]; self.rd = set().union(*R[1:])
            else:
                self.rd = set().union(*R) if R else set()
            self.lds_dma = lds
            self.wide_store = ("store" in op) and (op.endswith("x3") or op.endswith("x4"))
            self.store_data = (R[0] if op.startswith("buffer_") else R[1]) if "store" in op else set()
        elif self.is_salu:
            if op.startswith(("s_cmp", "s_waitcnt", "s_barrier", "s_nop", "s_branch", "s_cbranch", "s_endpgm", "s_sleep", "s_setprio", "s_bitcmp")):
                self.rd = set().union(*R) if R else set()
            else:
                self.wr = R[0] if R else set(); self.rd = set().union(*R[1:]) if len(R) > 1 else set()
                if "saveexec" in op:
                    self.wr |= regs_of("exec")
    def states(self):
        if self.op == "s_nop":
            return int(self.ops[0], 0) + 1
        return 1

def vonly(rs): return {r for r in rs if r[0] in ("v", "a")}
def sonly(rs): return {r for r in rs if r[0] == "s"}

def need(prev, cur):
    n = 0
    if prev.is_valu:
        pw = vonly(prev.wr); ps = sonly(prev.wr)
        if pw & cur.rd:
            if cur.is_mfma: n = max(n, 2)
            if cur.is_dpp or cur.is_permlane: n = max(n, 2)
            if cur.op.startswith(("v_readlane", "v_readfirstlane")): n = max(n, 1)
            if prev.is_trans and cur.is_valu and not cur.is_trans: n = max(n, 1)
            if prev.is_trans and (cur.is_mfma): n = max(n, 2)
        if ps & cur.rd:
            if cur.is_vmem: n = max(n, 5)
            if cur.is_valu or cur.is_mfma: n = max(n, 2)
            if cur.is_lane: n = max(n, 4)
            if cur.is_salu: n = max(n, 1)
        execw = {("s", "exec_lo"), ("s", "exec_hi")} & prev.wr
        if execw:
            if cur.is_dpp: n = max(n, 5)
            if cur.is_mfma or cur.is_permlane or cur.is_lane: n = max(n, 4)
    if prev.is_salu and ("s", "m0") in prev.wr and cur.is_vmem and getattr(cur, "lds_dma", False):
        n = max(n, 1)
    if prev.is_salu and ({("s", "exec_lo"), ("s", "exec_hi")} & prev.wr):
        if cur.is_dpp: n = max(n, 5)
    if prev.is_mfma:
        P = prev.passes
        d = prev.wr
        if cur.is_mfma:
            if d & cur.srcab: n = max(n, {4: 8, 8: 12}[P])
            if d & cur.srcc:
                if not (cur.srcc == d and cur.passes == P): n = max(n, {4: 6, 8: 10}[P])
            if (d & cur.wr) and not (cur.srcc == d): n = max(n, {4: 8, 8: 12}[P])
        else:
            if d & (cur.rd | cur.wr): n = max(n, {4: 8, 8: 12}[P])
            if cur.is_valu and (prev.srcc & cur.wr): n = max(n, {4: 3, 8: 7}[P])
    if prev.is_vmem and getattr(prev, "wide_store", False):
        if prev.store_data & cur.wr: n = max(n, 2)
    return n

class Asm:
    def __init__(self):
        self.lines = []
    def __call__(self, text):
        for t in text.split("\n"):
            t = t.strip()
            if not t: continue
            if t.startswith(";") or t.endswith(":") or t.startswith("."):
                self.lines.append(t)
            else:
                self.lines.append(Ins(t))
    def label(self, name): self.lines.append(name + ":")
    def c(self, text): self.lines.append("; " + text)
    def render(self):
        out = []; hist = []
        nops = 0
        for e in self.lines:
            if isinstance(e, str):
                out.append(e if (e.endswith(":") or e.startswith(".")) else "  " + e)
                continue
            req = 0; dist = 0
            for p in reversed(hist):
                r = need(p, e) - dist
                req = max(req, r)
                dist += p.states()
                if dist > 20: break
            while req > 0:
                k = min(req, 16)
                ins = Ins(f"s_nop {k-1}")
                hist.append(ins); out.append("  " + ins.text); req -= k; nops += 1
            hist.append(e); out.append("  " + e.text)
        self.nops = nops
        return "\n".join(out) + "\n"
```

```python
import sys
from asmlib import Asm, v, s

NAME = "sequential_preLN__sliding_block_cached__glu_gated_geglu__decode"

WS_EPOCH = 0
WS_TOK   = 0x1000
WS_QP    = 0x2000
WS_O     = 0x40000
WS_ML    = 0x80000
WS_Y     = 0x84000
WS_Z     = 0x88000
WS_STAMP = 0xC0000
WS_SIZE  = 0x100000
K_LDS  = 0
V_LDS  = 65536
WQ_LDS = 131072
LN_LDS = 147456
Q_LDS  = 151552
PX_LDS = 152704
MX_LDS = 156800
LS_LDS = 157824
RED_LDS = 158848
CS_LDS = RED_LDS + 1024
LDS_SIZE = 161792

LOG2E = 1.4426950408889634

def f32(x):
    import struct
    return "0x%08x" % struct.unpack("<I", struct.pack("<f", x))[0]

class Cfg:
    stamps = False
    tail_pos = 1
    spin_max = 200000
    pol_kv = "nt"
    pol_w = "nt"

def gen(cfg):
    a = Asm()
    sB, sW, sJ, sSP, sTAG, sCNT = 2, 3, 4, 5, 6, 7
    S_WS, S_K, S_V, S_WQ, S_X, S_WA, S_WB, S_WC, S_OUT = 8, 12, 16, 20, 24, 28, 32, 36, 40
    sP = 44
    pX, pK, pV, pWQ, pWO, pBX, pG, pU, pD, pOUT, pDBG, pWS = [sP + 2 * i for i in range(12)]
    sT0, sT1, sT2, sT3, sT4, sT5 = 68, 69, 70, 71, 72, 73
    sROLE, sH, sC7, sF, sO = 74, 75, 76, 77, 78
    sM1, sM2, sM3 = 80, 82, 84
    sST = 86
    sKOFF, sVOFF = 88, 89
    sMSK = 90

    vTID, vL, vN, vG = 0, 1, 2, 3
    vT = 4
    nstamp = [0]
    nlab = [0]

    def stamp():
        if not cfg.stamps: return
        i = nstamp[0]; nstamp[0] += 1
        nlab[0] += 1
        lab = f"L_st{nlab[0]}"
        a(f"s_cmp_lg_u32 {s(sW)}, 0")
        a(f"s_cbranch_scc1 {lab}")
        a(f"s_memrealtime {s(sST,2)}")
        a("s_waitcnt lgkmcnt(0)")
        a(f"v_mov_b32 v250, {s(sST)}")
        a(f"v_mov_b32 v251, {s(sST+1)}")
        a(f"s_lshl_b32 {s(sST)}, {s(sB)}, 7")
        a(f"s_add_u32 {s(sST)}, {s(sST)}, {WS_STAMP + 8*i}")
        a(f"v_mov_b32 v252, {s(sST)}")
        a(f"v_cmp_eq_u32 vcc, 0, {v(vL)}")
        a(f"v_mov_b32 v253, 0x7ffffff0")
        a(f"v_cndmask_b32 v252, v253, v252, vcc")
        a(f"buffer_store_dwordx2 v[250:251], v252, {s(S_WS,4)}, 0 offen")
        a("s_waitcnt vmcnt(63)")
        a.label(lab)

    def srd(dst, ptr, size):
        a(f"s_mov_b32 {s(dst)}, {s(ptr)}")
        a(f"s_and_b32 {s(dst+1)}, {s(ptr+1)}, 0xffff")
        a(f"s_mov_b32 {s(dst+2)}, {size}")
        a(f"s_mov_b32 {s(dst+3)}, 0x20000")

    def row_allreduce(op, x):
        for r in (8, 4, 2, 1):
            a(f"{op}_dpp {v(x)}, {v(x)}, {v(x)} row_ror:{r} row_mask:0xf bank_mask:0xf")
    def g_allreduce(op, x, t):
        a(f"v_mov_b32 {v(t)}, {v(x)}")
        a(f"v_permlane16_swap_b32 {v(x)}, {v(t)}")
        a(f"{op} {v(x)}, {v(x)}, {v(t)}")
        a(f"v_mov_b32 {v(t)}, {v(x)}")
        a(f"v_permlane32_swap_b32 {v(x)}, {v(t)}")
        a(f"{op} {v(x)}, {v(x)}, {v(t)}")
    def wave_allreduce(op, x, t):
        row_allreduce(op, x); g_allreduce(op, x, t)
    def round_bf16(dst, src):
        a(f"v_cvt_pk_bf16_f32 {v(dst)}, {v(src)}, {v(src)}")
        a(f"v_lshlrev_b32 {v(dst)}, 16, {v(dst)}")

    def spin_check(lab_retry, lab_ok):
        a(f"s_cbranch_vccz {lab_ok}")
        a(f"s_sub_u32 {s(sCNT)}, {s(sCNT)}, 1")
        a(f"s_cbranch_scc0 {lab_retry}")
        a.label(lab_ok)

    a.label(f"{NAME}_kernel")
    a(f"s_cmp_ge_u32 {s(sB)}, 256")
    a("s_cbranch_scc1 L_end")
    a(f"s_load_dwordx16 {s(sP,16)}, s[0:1], 0")
    a(f"s_load_dwordx8 {s(sP+16,8)}, s[0:1], 64")
    a(f"v_lshrrev_b32 {v(vT)}, 6, {v(vTID)}")
    a(f"v_and_b32 {v(vL)}, 63, {v(vTID)}")
    a(f"v_readfirstlane_b32 {s(sW)}, {v(vT)}")
    a(f"v_and_b32 {v(vN)}, 15, {v(vL)}")
    a(f"v_lshrrev_b32 {v(vG)}, 4, {v(vL)}")
    a(f"s_and_b32 {s(sJ)}, {s(sB)}, 7")
    a(f"s_lshr_b32 {s(sSP)}, {s(sB)}, 3")
    a(f"s_mov_b32 {s(sCNT)}, {cfg.spin_max}")
    a(f"s_mov_b32 {s(sROLE)}, 0")
    a(f"s_cmp_ge_u32 {s(sSP)}, 14")
    a(f"s_cselect_b32 {s(sROLE)}, 1, 0")
    a(f"s_cmp_ge_u32 {s(sSP)}, 28")
    a(f"s_cselect_b32 {s(sROLE)}, 2, {s(sROLE)}")
    a(f"s_cmp_ge_u32 {s(sSP)}, 7")
    a(f"s_cselect_b32 {s(sT0)}, 1, 0")
    a(f"s_lshl_b32 {s(sH)}, {s(sJ)}, 1")
    a(f"s_add_u32 {s(sH)}, {s(sH)}, {s(sT0)}")
    a(f"s_mul_i32 {s(sT0)}, {s(sT0)}, 7")
    a(f"s_sub_u32 {s(sC7)}, {s(sSP)}, {s(sT0)}")
    a(f"s_mul_i32 {s(sF)}, {s(sJ)}, 14")
    a(f"s_add_u32 {s(sF)}, {s(sF)}, {s(sSP)}")
    a(f"s_sub_u32 {s(sF)}, {s(sF)}, 14")
    a(f"s_sub_u32 {s(sO)}, {s(sSP)}, 28")
    a(f"s_lshl_b32 {s(sO)}, {s(sO)}, 3")
    a(f"s_add_u32 {s(sO)}, {s(sO)}, {s(sJ)}")
    a(f"s_lshl_b32 {s(sT0)}, {s(sJ)}, 23")
    a(f"s_lshl_b32 {s(sT1)}, {s(sSP)}, 16")
    a(f"s_add_u32 {s(sVOFF)}, {s(sT0)}, {s(sT1)}")
    a(f"s_add_u32 {s(sVOFF)}, {s(sVOFF)}, {12288*512}")
    a(f"s_lshl_b32 {s(sT0)}, {s(sW)}, 14")
    a(f"s_add_u32 {s(sKOFF)}, {s(sVOFF)}, {s(sT0)}")

    vXo, vClr, vWQo, vK0, vVo = 16, 17, 18, 20, 19
    a(f"v_lshlrev_b32 {v(vXo)}, 4, {v(vL)}")
    a(f"v_lshrrev_b32 {v(vT)}, 3, {v(vL)}")
    a(f"v_and_b32 {v(vT+1)}, 7, {v(vL)}")
    a(f"v_bfe_u32 {v(vT+2)}, {v(vT)}, 1, 1")
    a(f"s_and_b32 {s(sT0)}, {s(sW)}, 1")
    a(f"s_lshl_b32 {s(sT0)}, {s(sT0)}, 2")
    a(f"v_lshlrev_b32 {v(vT+2)}, 1, {v(vT+2)}")
    a(f"v_or_b32 {v(vT+2)}, {s(sT0)}, {v(vT+2)}")
    a(f"v_xor_b32 {v(vT+2)}, {v(vT+1)}, {v(vT+2)}")
    a(f"v_lshlrev_b32 {v(vT+2)}, 4, {v(vT+2)}")
    a(f"v_lshl_add_u32 {v(vWQo)}, {v(vT)}, 13, {v(vT+2)}")
    a(f"v_bfe_u32 {v(vT+2)}, {v(vT)}, 1, 2")
    a(f"v_lshlrev_b32 {v(vT+2)}, 1, {v(vT+2)}")
    a(f"v_xor_b32 {v(vT+2)}, {v(vT+1)}, {v(vT+2)}")
    a(f"v_lshlrev_b32 {v(vT+2)}, 4, {v(vT+2)}")
    a(f"v_lshl_add_u32 {v(vVo)}, {v(vT)}, 9, {v(vT+2)}")
    a(f"s_lshl_b32 {s(sT0)}, {s(sW)}, 7")
    a(f"v_add_u32 {v(vVo)}, {s(sT0)}, {v(vVo)}")
    a(f"v_lshrrev_b32 {v(vT)}, 5, {v(vL)}")
    a(f"v_and_b32 {v(vT+1)}, 31, {v(vL)}")
    a(f"v_xor_b32 {v(vT+1)}, {v(vT+1)}, {v(vT)}")
    a(f"v_lshlrev_b32 {v(vT+1)}, 4, {v(vT+1)}")
    a(f"v_lshl_add_u32 {v(vK0)}, {v(vT)}, 9, {v(vT+1)}")
    for jj in range(1, 8):
        a(f"v_xor_b32 {v(vK0+jj)}, {(2*jj) << 4}, {v(vK0)}")
    OOB = 0x7ffffff0
    a(f"v_mov_b32 {v(vClr)}, {OOB}")
    a(f"s_cmp_eq_u32 {s(sW)}, 0")
    a("s_cbranch_scc1 L_clr_w0")
    a(f"s_cmp_eq_u32 {s(sW)}, 3")
    a("s_cbranch_scc1 L_clr_w3")
    a(f"s_cmp_lg_u32 {s(sROLE)}, 1")
    a("s_cbranch_scc1 L_clr_done")
    a(f"s_mul_i32 {s(sT0)}, {s(sF)}, 1792")
    a(f"s_sub_u32 {s(sT1)}, {s(sW)}, 1")
    a(f"s_mul_i32 {s(sT1)}, {s(sT1)}, 896")
    a(f"s_add_u32 {s(sT0)}, {s(sT0)}, {s(sT1)}")
    a(f"s_add_u32 {s(sT0)}, {s(sT0)}, {WS_Z}")
    a(f"v_add_u32 {v(vT)}, {s(sT0)}, {v(vXo)}")
    a(f"v_cmp_gt_u32 vcc, 56, {v(vL)}")
    a(f"v_cndmask_b32 {v(vClr)}, {v(vClr)}, {v(vT)}, vcc")
    a("s_branch L_clr_done")
    a.label("L_clr_w0")
    a(f"v_lshrrev_b32 {v(vT)}, 5, {v(vL)}")
    a(f"v_and_b32 {v(vT+1)}, 31, {v(vL)}")
    a(f"v_lshlrev_b32 {v(vT+1)}, 4, {v(vT+1)}")
    a(f"v_lshl_add_u32 {v(vClr)}, {v(vT)}, 14, {v(vT+1)}")
    a(f"s_lshl_b32 {s(sT0)}, {s(sJ)}, 15")
    a(f"s_lshl_b32 {s(sT1)}, {s(sSP)}, 9")
    a(f"s_add_u32 {s(sT0)}, {s(sT0)}, {s(sT1)}")
    a(f"s_add_u32 {s(sT0)}, {s(sT0)}, {WS_O}")
    a(f"v_add_u32 {v(vClr)}, {s(sT0)}, {v(vClr)}")
    a("s_branch L_clr_done")
    a.label("L_clr_w3")
    a(f"s_lshl_b32 {s(sT0)}, {s(sJ)}, 10")
    a(f"s_lshl_b32 {s(sT1)}, {s(sSP)}, 4")
    a(f"s_add_u32 {s(sT0)}, {s(sT0)}, {s(sT1)}")
    a(f"s_add_u32 {s(sT0)}, {s(sT0)}, {WS_ML}")
    a(f"v_lshlrev_b32 {v(vT)}, 9, {v(vL)}")
    a(f"v_add_u32 {v(vT)}, {s(sT0)}, {v(vT)}")
    a(f"v_cmp_gt_u32 vcc, 2, {v(vL)}")
    a(f"v_cndmask_b32 {v(vClr)}, {v(vClr)}, {v(vT)}, vcc")
    a(f"s_cmp_lg_u32 {s(sROLE)}, 0")
    a("s_cbranch_scc1 L_clr_done")
    a(f"s_mul_i32 {s(sT0)}, {s(sH)}, 896")
    a(f"s_lshl_b32 {s(sT1)}, {s(sC7)}, 7")
    a(f"s_add_u32 {s(sT0)}, {s(sT0)}, {s(sT1)}")
    a(f"s_add_u32 {s(sT0)}, {s(sT0)}, {WS_Y - 128}")
    a(f"v_add_u32 {v(vT)}, {s(sT0)}, {v(vXo)}")
    a(f"v_lshrrev_b32 {v(vT+1)}, 3, {v(vL)}")
    a(f"v_cmp_eq_u32 vcc, 1, {v(vT+1)}")
    a(f"v_cndmask_b32 {v(vClr)}, {v(vClr)}, {v(vT)}, vcc")
    a.label("L_clr_done")
    vONES = 28
    for i in range(4):
        a(f"v_mov_b32 {v(vONES+i)}, -1")

    a("s_waitcnt lgkmcnt(0)")
    a(f"s_load_dword {s(sTAG)}, {s(pWS,2)}, {WS_EPOCH}")
    srd(S_X, pX, 896)
    srd(S_WS, pWS, WS_SIZE)
    srd(S_WQ, pWQ, 448*4096*2)
    vX = 32
    a(f"buffer_load_dwordx4 {v(vX,4)}, {v(vXo)}, {s(S_X,4)}, 0 offen")
    a(f"buffer_store_dwordx4 {v(vONES,4)}, {v(vClr)}, {s(S_WS,4)}, 0 offen sc1")
    a(f"s_lshr_b32 {s(sT0)}, {s(sSP)}, 3")
    a(f"s_mul_i32 {s(sT0)}, {s(sT0)}, {112*8192}")
    a(f"s_and_b32 {s(sT1)}, {s(sSP)}, 7")
    a(f"s_lshl_b32 {s(sT2)}, {s(sJ)}, 3")
    a(f"s_add_u32 {s(sT1)}, {s(sT1)}, {s(sT2)}")
    a(f"s_lshl_b32 {s(sT1)}, {s(sT1)}, 7")
    a(f"s_add_u32 {s(sT0)}, {s(sT0)}, {s(sT1)}")
    a(f"s_lshl_b32 {s(sT1)}, {s(sW)}, 16")
    a(f"s_add_u32 {s(sT0)}, {s(sT0)}, {s(sT1)}")
    a(f"s_lshl_b32 {s(sT1)}, {s(sW)}, 10")
    a(f"s_add_u32 {s(sT1)}, {s(sT1)}, {WQ_LDS}")
    for m in range(4):
        if m == 3:
            a(f"s_cmp_ge_u32 {s(sW)}, 2")
            a(f"s_cselect_b32 {s(sT2)}, {4*8*8192}, 0")
            a(f"s_sub_u32 {s(sT0)}, {s(sT0)}, {s(sT2)}")
            a(f"s_cselect_b32 {s(sT2)}, 4096, 0") if False else None
            a(f"s_cmp_ge_u32 {s(sW)}, 2")
            a(f"s_cselect_b32 {s(sT2)}, 4096, 0")
            a(f"s_sub_u32 {s(sT1)}, {s(sT1)}, {s(sT2)}")
        a(f"s_mov_b32 m0, {s(sT1)}")
        a(f"s_add_u32 {s(sT1)}, {s(sT1)}, 4096")
        a(f"buffer_load_dwordx4 {v(vWQo)}, {s(S_WQ,4)}, {s(sT0)} offen {cfg.pol_w} lds")
        a(f"s_add_u32 {s(sT0)}, {s(sT0)}, {4*8*8192}")
    srd(S_K, pK, 8*16384*512)
    a(f"s_lshl_b32 {s(sT1)}, {s(sW)}, 14")
    a(f"s_add_u32 {s(sT1)}, {s(sT1)}, {K_LDS}") if K_LDS else None
    a(f"s_mov_b32 {s(sT0)}, {s(sKOFF)}")
    for jj in range(16):
        if jj % 4 == 0:
            a(f"s_mov_b32 m0, {s(sT1)}")
            a(f"s_add_u32 {s(sT1)}, {s(sT1)}, 4096")
        a(f"buffer_load_dwordx4 {v(vK0 + jj % 8)}, {s(S_K,4)}, {s(sT0)} offen offset:{(jj%4)*1024} {cfg.pol_kv} lds")
        if jj % 4 == 3:
            a(f"s_add_u32 {s(sT0)}, {s(sT0)}, 4096")
    srd(S_V, pV, 8*16384*512)
    stamp()

    a.c("LN1")
    vXf = 36
    a("s_waitcnt vmcnt(21)")
    for i in range(4):
        a(f"v_lshlrev_b32 {v(vXf+2*i)}, 16, {v(vX+i)}")
        a(f"v_and_b32 {v(vXf+2*i+1)}, 0xffff0000, {v(vX+i)}")
    vS, vS2, vTmp, vMu, vD = 44, 45, 46, 47, 48
    a(f"v_add_f32 {v(vS)}, {v(vXf)}, {v(vXf+1)}")
    for i in range(2, 8):
        a(f"v_add_f32 {v(vS)}, {v(vS)}, {v(vXf+i)}")
    wave_allreduce("v_add_f32", vS, vTmp)
    a(f"v_mul_f32 {v(vMu)}, {f32(1.0/448)}, {v(vS)}")
    for i in range(8):
        a(f"v_sub_f32 {v(vD+i)}, {v(vXf+i)}, {v(vMu)}")
    a(f"v_mul_f32 {v(vS2)}, {v(vD)}, {v(vD)}")
    for i in range(1, 8):
        a(f"v_fmac_f32 {v(vS2)}, {v(vD+i)}, {v(vD+i)}")
    a(f"v_cmp_gt_u32 vcc, 56, {v(vL)}")
    a(f"v_cndmask_b32 {v(vS2)}, 0, {v(vS2)}, vcc")
    wave_allreduce("v_add_f32", vS2, vTmp)
    a(f"v_mul_f32 {v(vS2)}, {f32(1.0/448)}, {v(vS2)}")
    round_bf16(vS2, vS2)
    a(f"v_add_f32 {v(vS2)}, {f32(1e-5)}, {v(vS2)}")
    round_bf16(vS2, vS2)
    a(f"v_sqrt_f32 {v(vS2)}, {v(vS2)}")
    round_bf16(vS2, vS2)
    a(f"v_rcp_f32 {v(vS2)}, {v(vS2)}")
    round_bf16(vMu, vMu)
    for i in range(8):
        a(f"v_sub_f32 {v(vD+i)}, {v(vXf+i)}, {v(vMu)}")
    for i in range(4):
        a(f"v_cvt_pk_bf16_f32 {v(vX+i)}, {v(vD+2*i)}, {v(vD+2*i+1)}")
    for i in range(4):
        a(f"v_lshlrev_b32 {v(vD+2*i)}, 16, {v(vX+i)}")
        a(f"v_and_b32 {v(vD+2*i+1)}, 0xffff0000, {v(vX+i)}")
    for i in range(8):
        a(f"v_mul_f32 {v(vD+i)}, {v(vD+i)}, {v(vS2)}")
    for i in range(4):
        a(f"v_cvt_pk_bf16_f32 {v(vX+i)}, {v(vD+2*i)}, {v(vD+2*i+1)}")
    a(f"s_lshl_b32 {s(sT0)}, {s(sW)}, 10")
    a(f"s_add_u32 {s(sT0)}, {s(sT0)}, {LN_LDS}")
    a(f"v_add_u32 {v(vT)}, {s(sT0)}, {v(vXo)}")
    a(f"ds_write_b128 {v(vT)}, {v(vX,4)}")
    vQA = 36
    a(f"s_lshr_b32 {s(sT1)}, {s(sSP)}, 3")
    a(f"s_mul_i32 {s(sT1)}, {s(sT1)}, 224")
    a(f"s_add_u32 {s(sT0)}, {s(sT0)}, {s(sT1)}")
    a(f"v_lshlrev_b32 {v(vT+1)}, 4, {v(vG)}")
    a(f"v_add_u32 {v(vT+1)}, {s(sT0)}, {v(vT+1)}")
    a(f"v_lshlrev_b32 {v(vT+2)}, 3, {v(vG)}")
    a(f"v_add_u32 {v(vT+2)}, {s(sT0)}, {v(vT+2)}")
    a("s_waitcnt lgkmcnt(0)")
    for t in range(3):
        a(f"ds_read_b128 {v(vQA+4*t,4)}, {v(vT+1)} offset:{64*t}")
    a(f"ds_read_b64 {v(vQA+12,2)}, {v(vT+2)} offset:192")
    vR, vC = 50, 51
    a(f"v_lshrrev_b32 {v(vR)}, 2, {v(vN)}")
    a(f"v_and_b32 {v(vC)}, 3, {v(vN)}")
    vBA, vBA2 = 52, 53
    a(f"v_bfe_u32 {v(vT)}, {v(vR)}, 1, 1")
    a(f"v_and_b32 {v(vT+1)}, 1, {v(vG)}")
    a(f"v_lshl_or_b32 {v(vT)}, {v(vT+1)}, 1, {v(vT)}")
    a(f"v_xor_b32 {v(vT)}, {s(sW)}, {v(vT)}")
    a(f"v_lshlrev_b32 {v(vT)}, 5, {v(vT)}")
    a(f"v_lshl_add_u32 {v(vT)}, {v(vC)}, 3, {v(vT)}")
    a(f"v_lshl_add_u32 {v(vT+1)}, {v(vG)}, 3, {v(vR)}")
    a(f"v_lshl_add_u32 {v(vBA)}, {v(vT+1)}, 7, {v(vT)}")
    a(f"v_add_u32 {v(vBA)}, {WQ_LDS}, {v(vBA)}")
    a(f"v_bfe_u32 {v(vT)}, {v(vR)}, 1, 1")
    a(f"v_lshrrev_b32 {v(vT+1)}, 1, {v(vG)}")
    a(f"v_lshl_or_b32 {v(vT)}, {v(vT+1)}, 1, {v(vT)}")
    a(f"v_xor_b32 {v(vT)}, {s(sW)}, {v(vT)}")
    a(f"v_lshlrev_b32 {v(vT)}, 5, {v(vT)}")
    a(f"v_lshl_add_u32 {v(vT)}, {v(vC)}, 3, {v(vT)}")
    a(f"v_lshl_add_u32 {v(vT+1)}, {v(vG)}, 2, {v(vR)}")
    a(f"v_lshl_add_u32 {v(vBA2)}, {v(vT+1)}, 7, {v(vT)}")
    a(f"v_add_u32 {v(vBA2)}, {WQ_LDS + 96*128}, {v(vBA2)}")
    a("s_waitcnt vmcnt(16)")
    a("s_barrier")
    stamp()
    vQB = 56
    for t in range(3):
        a(f"ds_read_b64_tr_b16 {v(vQB+4*t,2)}, {v(vBA)} offset:{4096*t}")
        a(f"ds_read_b64_tr_b16 {v(vQB+4*t+2,2)}, {v(vBA)} offset:{4096*t+512}")
    a(f"ds_read_b64_tr_b16 {v(vQB+12,2)}, {v(vBA2)}")
    vAcc = 72
    a("s_waitcnt lgkmcnt(0)")
    a(f"v_mfma_f32_16x16x32_bf16 {v(vAcc,4)}, {v(vQA,4)}, {v(vQB,4)}, 0")
    a(f"v_mfma_f32_16x16x32_bf16 {v(vAcc,4)}, {v(vQA+4,4)}, {v(vQB+4,4)}, {v(vAcc,4)}")
    a(f"v_mfma_f32_16x16x32_bf16 {v(vAcc,4)}, {v(vQA+8,4)}, {v(vQB+8,4)}, {v(vAcc,4)}")
    a(f"v_mfma_f32_16x16x16_bf16 {v(vAcc+4,4)}, {v(vQA+12,2)}, {v(vQB+12,2)}, 0")
    a(f"s_lshr_b32 {s(sT0)}, {s(sSP)}, 3")
    a(f"s_lshl_b32 {s(sT0)}, {s(sT0)}, 15")
    a(f"s_and_b32 {s(sT1)}, {s(sSP)}, 7")
    a(f"s_lshl_b32 {s(sT2)}, {s(sJ)}, 3")
    a(f"s_add_u32 {s(sT1)}, {s(sT1)}, {s(sT2)}")
    a(f"s_lshl_b32 {s(sT1)}, {s(sT1)}, 9")
    a(f"s_add_u32 {s(sT0)}, {s(sT0)}, {s(sT1)}")
    a(f"s_lshl_b32 {s(sT1)}, {s(sW)}, 7")
    a(f"s_add_u32 {s(sT0)}, {s(sT0)}, {s(sT1)}")
    a(f"s_add_u32 {s(sT0)}, {s(sT0)}, {WS_QP}")
    a(f"v_lshlrev_b32 {v(vT)}, 3, {v(vL)}")
    a(f"v_add_u32 {v(vT)}, {s(sT0)}, {v(vT)}")
    a(f"v_mov_b32 {v(vT+1)}, {OOB}")
    a(f"v_cmp_gt_u32 vcc, 16, {v(vL)}")
    a(f"v_cndmask_b32 {v(vT)}, {v(vT+1)}, {v(vT)}, vcc")
    a("s_waitcnt lgkmcnt(0)")
    a(f"s_mul_i32 {s(sTAG)}, {s(sTAG)}, 1664525")
    a(f"s_add_u32 {s(sTAG)}, {s(sTAG)}, 1013904223")
    a(f"v_add_f32 {v(vAcc)}, {v(vAcc)}, {v(vAcc+4)}")
    a(f"v_mov_b32 {v(vAcc+1)}, {s(sTAG)}")
    a(f"buffer_store_dwordx2 {v(vAcc,2)}, {v(vT)}, {s(S_WS,4)}, 0 offen sc1")
    a(f"s_lshl_b32 {s(sT0)}, {s(sB)}, 4")
    a(f"s_lshl_b32 {s(sT1)}, {s(sW)}, 2")
    a(f"s_add_u32 {s(sT0)}, {s(sT0)}, {s(sT1)}")
    a(f"s_add_u32 {s(sT0)}, {s(sT0)}, {WS_TOK}")
    a(f"v_mov_b32 {v(vT+2)}, {s(sT0)}")
    a(f"v_cmp_eq_u32 vcc, 0, {v(vL)}")
    a(f"v_cndmask_b32 {v(vT+2)}, {v(vT+1)}, {v(vT+2)}, vcc")
    a(f"buffer_store_dword {v(vAcc+1)}, {v(vT+2)}, {s(S_WS,4)}, 0 offen sc1")
    stamp()
    a(f"s_lshl_b32 {s(sT1)}, {s(sW)}, 14")
    a(f"s_add_u32 {s(sT1)}, {s(sT1)}, {V_LDS}")
    a(f"s_mov_b32 {s(sT0)}, {s(sVOFF)}")
    def v_dma(n):
        for i in range(n):
            a(f"s_mov_b32 m0, {s(sT1)}")
            a(f"s_add_u32 {s(sT1)}, {s(sT1)}, 1024")
            a(f"buffer_load_dwordx4 {v(vVo)}, {s(S_V,4)}, {s(sT0)} offen {cfg.pol_kv} lds")
            a(f"s_add_u32 {s(sT0)}, {s(sT0)}, 4096")
    v_dma(8)
    a(f"s_mov_b32 {s(sT4)}, {s(sT0)}")
    a(f"s_mov_b32 {s(sT5)}, {s(sT1)}")
    vGa, vGt = 36, 37
    a(f"s_lshl_b32 {s(sT2)}, {s(sJ)}, 12")
    a(f"s_add_u32 {s(sT2)}, {s(sT2)}, {WS_QP}")
    a(f"v_lshlrev_b32 {v(vGt)}, 4, {v(vTID)}")
    a(f"v_add_u32 {v(vGa)}, {s(sT2)}, {v(vGt)}")
    a(f"v_add_u32 {v(vGt)}, {WS_TOK}, {v(vGt)}")
    vGq = 40
    a("s_waitcnt vmcnt(10)")
    stamp()
    def h1_loads():
        for kq in range(4):
            a(f"s_mov_b32 {s(sT2)}, {kq*32768}")
            a(f"buffer_load_dwordx4 {v(vGq+4*kq,4)}, {v(vGa)}, {s(S_WS,4)}, {s(sT2)} offen sc1")
        a(f"buffer_load_dwordx4 {v(vGq+16,4)}, {v(vGt)}, {s(S_WS,4)}, 0 offen sc1")
    h1_loads()
    a(f"s_mov_b32 {s(sT0)}, {s(sT4)}")
    a(f"s_mov_b32 {s(sT1)}, {s(sT5)}")
    v_dma(8)
    a("s_waitcnt vmcnt(8)")
    a("s_branch L_h1_check")
    a.label("L_h1_retry")
    h1_loads()
    a("s_waitcnt vmcnt(0)")
    a.label("L_h1_check")
    vE = 60
    a(f"v_xor_b32 {v(vE)}, {s(sTAG)}, {v(vGq+1)}")
    for r in [3, 5, 7, 9, 11, 13, 15, 16, 17, 18, 19]:
        a(f"v_xor_b32 {v(vE+1)}, {s(sTAG)}, {v(vGq+r)}")
        a(f"v_or_b32 {v(vE)}, {v(vE)}, {v(vE+1)}")
    a(f"v_cmp_ne_u32 vcc, 0, {v(vE)}")
    a("s_and_b64 vcc, exec, vcc")
    spin_check("L_h1_retry", "L_h1_ok")
    stamp()
    a(f"v_add_f32 {v(vGq)}, {v(vGq)}, {v(vGq+4)}")
    a(f"v_add_f32 {v(vGq+8)}, {v(vGq+8)}, {v(vGq+12)}")
    a(f"v_add_f32 {v(vGq+2)}, {v(vGq+2)}, {v(vGq+6)}")
    a(f"v_add_f32 {v(vGq+10)}, {v(vGq+10)}, {v(vGq+14)}")
    a(f"v_add_f32 {v(vGq)}, {v(vGq)}, {v(vGq+8)}")
    a(f"v_add_f32 {v(vGq+2)}, {v(vGq+2)}, {v(vGq+10)}")
    a(f"v_cvt_pk_bf16_f32 {v(vGq)}, {v(vGq)}, {v(vGq+2)}")
    a(f"v_lshlrev_b32 {v(vT)}, 2, {v(vTID)}")
    a(f"v_add_u32 {v(vT)}, {Q_LDS}, {v(vT)}")
    a(f"ds_write_b32 {v(vT)}, {v(vGq)}")
    vKA = 32
    a(f"v_and_b32 {v(vT)}, 3, {v(vN)}")
    a(f"v_xor_b32 {v(vT)}, {v(vG)}, {v(vT)}")
    a(f"v_lshrrev_b32 {v(vT+1)}, 2, {v(vN)}")
    a(f"v_lshl_or_b32 {v(vT)}, {v(vT+1)}, 2, {v(vT)}")
    a(f"v_lshlrev_b32 {v(vT)}, 4, {v(vT)}")
    a(f"v_lshl_add_u32 {v(vT)}, {v(vN)}, 9, {v(vT)}")
    a(f"s_lshl_b32 {s(sT0)}, {s(sW)}, 14")
    a(f"v_add_u32 {v(vKA)}, {s(sT0)}, {v(vT)}")
    for tt in range(1, 4):
        a(f"v_xor_b32 {v(vKA+tt)}, {tt << 6}, {v(vKA)}")
    a(f"v_and_b32 {v(vT)}, 1, {v(vN)}")
    a(f"v_lshlrev_b32 {v(vT)}, 9, {v(vT)}")
    a(f"v_lshl_add_u32 {v(vT)}, {v(vG)}, 4, {v(vT)}")
    a(f"v_add_u32 {v(vT)}, {Q_LDS}, {v(vT)}")
    vKF = 64
    for kb in range(2):
        for t in range(8):
            a(f"ds_read_b128 {v(vKF + 4*(8*kb+t), 4)}, {v(vKA + (t & 3))} offset:{kb*8192 + (t >> 2)*256}")
    a("s_waitcnt lgkmcnt(0)")
    a("s_barrier")
    vQF = 128
    for t in range(8):
        a(f"ds_read_b128 {v(vQF+4*t,4)}, {v(vT)} offset:{64*t}")
    vSc = 160
    for t in range(8):
        a(f"s_waitcnt lgkmcnt({7-t})")
        for kb in range(2):
            c = "0" if t == 0 else v(vSc+4*kb, 4)
            a(f"v_mfma_f32_16x16x32_bf16 {v(vSc+4*kb,4)}, {v(vKF + 4*(8*kb+t),4)}, {v(vQF+4*t,4)}, {c}")
    vPk = 168
    vZ = 172
    for i in range(4):
        a(f"v_cvt_pk_bf16_f32 {v(vPk+i)}, {v(vSc+2*i)}, {v(vSc+2*i+1)}")
    for i in range(4):
        a(f"v_lshlrev_b32 {v(vZ+2*i)}, 16, {v(vPk+i)}")
        a(f"v_and_b32 {v(vZ+2*i+1)}, 0xffff0000, {v(vPk+i)}")
    vM, vMt, vLs = 180, 181, 182
    a(f"v_max3_f32 {v(vM)}, {v(vZ)}, {v(vZ+1)}, {v(vZ+2)}")
    a(f"v_max3_f32 {v(vM)}, {v(vM)}, {v(vZ+3)}, {v(vZ+4)}")
    a(f"v_max3_f32 {v(vM)}, {v(vM)}, {v(vZ+5)}, {v(vZ+6)}")
    a(f"v_max_f32 {v(vM)}, {v(vM)}, {v(vZ+7)}")
    g_allreduce("v_max_f32", vM, vMt)
    vLa = 183
    a(f"v_lshlrev_b32 {v(vLa)}, 2, {v(vL)}")
    a(f"s_lshl_b32 {s(sT0)}, {s(sW)}, 8")
    a(f"v_add_u32 {v(vT)}, {s(sT0)}, {v(vLa)}")
    a(f"ds_write_b32 {v(vT)}, {v(vM)} offset:{MX_LDS - 131072}") if False else None
    a(f"v_add_u32 {v(vT+1)}, {MX_LDS}, {v(vT)}")
    a(f"ds_write_b32 {v(vT+1)}, {v(vM)}")
    a(f"v_add_u32 {v(vT+2)}, {MX_LDS}, {v(vLa)}")
    a("s_waitcnt lgkmcnt(0)")
    a("s_barrier")
    for i in range(4):
        a(f"ds_read_b32 {v(vT+4+i)}, {v(vT+2)} offset:{256*i}")
    a("s_waitcnt lgkmcnt(0)")
    a(f"v_max3_f32 {v(vM)}, {v(vT+4)}, {v(vT+5)}, {v(vT+6)}")
    a(f"v_max_f32 {v(vM)}, {v(vM)}, {v(vT+7)}")
    CSC = LOG2E / 16.0
    a(f"s_mov_b32 {s(sT0)}, {f32(CSC)}")
    for i in range(8):
        a(f"v_sub_f32 {v(vZ+i)}, {v(vZ+i)}, {v(vM)}")
    for i in range(8):
        a(f"v_mul_f32 {v(vZ+i)}, {s(sT0)}, {v(vZ+i)}")
    for i in range(8):
        a(f"v_exp_f32 {v(vZ+i)}, {v(vZ+i)}")
    a(f"v_mul_f32 {v(vM)}, {s(sT0)}, {v(vM)}")
    a(f"v_add_f32 {v(vLs)}, {v(vZ)}, {v(vZ+1)}")
    for i in range(2, 8):
        a(f"v_add_f32 {v(vLs)}, {v(vLs)}, {v(vZ+i)}")
    for i in range(4):
        a(f"v_cvt_pk_bf16_f32 {v(vPk+i)}, {v(vZ+2*i)}, {v(vZ+2*i+1)}")
    g_allreduce("v_add_f32", vLs, vMt)
    a(f"s_lshl_b32 {s(sT1)}, {s(sW)}, 10")
    a(f"v_lshlrev_b32 {v(vT+3)}, 4, {v(vL)}")
    a(f"v_add_u32 {v(vT+3)}, {PX_LDS}, {v(vT+3)}")
    a(f"v_add_u32 {v(vT+4)}, {s(sT1)}, {v(vT+3)}")
    a(f"ds_write_b128 {v(vT+4)}, {v(vPk,4)}")
    a(f"v_add_u32 {v(vT+1)}, {LS_LDS - MX_LDS}, {v(vT+1)}")
    a(f"ds_write_b32 {v(vT+1)}, {v(vLs)}")
    a(f"v_add_u32 {v(vT+2)}, {LS_LDS - MX_LDS}, {v(vT+2)}")
    a("s_waitcnt lgkmcnt(0)")
    a("s_barrier")
    vP = 184
    for i in range(4):
        a(f"ds_read_b128 {v(vP+4*i,4)}, {v(vT+3)} offset:{1024*i}")
    for i in range(4):
        a(f"ds_read_b32 {v(vT+4+i)}, {v(vT+2)} offset:{256*i}")
    a("s_waitcnt lgkmcnt(0)")
    a(f"v_add_f32 {v(vLs)}, {v(vT+4)}, {v(vT+5)}")
    a(f"v_add_f32 {v(vT+6)}, {v(vT+6)}, {v(vT+7)}")
    a(f"v_add_f32 {v(vLs)}, {v(vLs)}, {v(vT+6)}")
    stamp()

    NT = {0: 8, 1: 12, 2: 0}
    def tail_dma():
        a(f"s_cmp_eq_u32 {s(sROLE)}, 2")
        a("s_cbranch_scc1 L_tail_done")
        a(f"s_cmp_eq_u32 {s(sROLE)}, 1")
        a("s_cbranch_scc1 L_tail_f")
        srd(S_WA, pWO, 4096*448*2)
        a(f"v_lshrrev_b32 {v(vT)}, 3, {v(vL)}")
        a(f"v_and_b32 {v(vT+1)}, 7, {v(vL)}")
        a(f"v_bfe_u32 {v(vT+2)}, {v(vT)}, 1, 1")
        a(f"v_lshlrev_b32 {v(vT+2)}, 1, {v(vT+2)}")
        a(f"v_xor_b32 {v(vT+1)}, {v(vT+1)}, {v(vT+2)}")
        a(f"v_xor_b32 {v(vT+2)}, 4, {v(vT+1)}")
        a(f"v_mul_u32_u24 {v(vT)}, 896, {v(vT)}")
        a(f"v_lshl_add_u32 {v(vT+1)}, {v(vT+1)}, 4, {v(vT)}")
        a(f"v_lshl_add_u32 {v(vT+2)}, {v(vT+2)}, 4, {v(vT)}")
        a(f"s_lshl_b32 {s(sT0)}, {s(sH)}, 8")
        a(f"s_lshl_b32 {s(sT1)}, {s(sW)}, 6")
        a(f"s_add_u32 {s(sT0)}, {s(sT0)}, {s(sT1)}")
        a(f"s_mul_i32 {s(sT0)}, {s(sT0)}, 896")
        a(f"s_lshl_b32 {s(sT1)}, {s(sC7)}, 7")
        a(f"s_add_u32 {s(sT0)}, {s(sT0)}, {s(sT1)}")
        a(f"s_lshl_b32 {s(sT1)}, {s(sW)}, 14")
        for i in range(8):
            a(f"s_mov_b32 m0, {s(sT1)}")
            a(f"s_add_u32 {s(sT1)}, {s(sT1)}, 1024")
            a(f"buffer_load_dwordx4 {v(vT+1+(i&1))}, {s(S_WA,4)}, {s(sT0)} offen {cfg.pol_w} lds")
            a(f"s_add_u32 {s(sT0)}, {s(sT0)}, {8*896}")
        a("s_branch L_tail_done")
        a.label("L_tail_f")
        srd(S_WA, pG, 448*1792*2)
        srd(S_WB, pU, 448*1792*2)
        srd(S_WC, pD, 1792*448*2)
        a(f"v_lshrrev_b32 {v(vT)}, 1, {v(vL)}")
        a(f"v_bfe_u32 {v(vT+1)}, {v(vT)}, 3, 1")
        a(f"v_lshlrev_b32 {v(vT+1)}, 2, {v(vT+1)}")
        a(f"v_xor_b32 {v(vT)}, {v(vT)}, {v(vT+1)}")
        a(f"v_mul_u32_u24 {v(vT)}, 3584, {v(vT)}")
        a(f"v_and_b32 {v(vT+1)}, 1, {v(vL)}")
        a(f"v_lshl_add_u32 {v(vT)}, {v(vT+1)}, 4, {v(vT)}")
        a(f"s_mul_i32 {s(sT0)}, {s(sW)}, {32*3584}")
        a(f"s_lshl_b32 {s(sT1)}, {s(sF)}, 5")
        a(f"s_add_u32 {s(sT0)}, {s(sT0)}, {s(sT1)}")
        a(f"s_lshl_b32 {s(sT1)}, {s(sW)}, 14")
        for m in range(4):
            if m == 3:
                a(f"s_cmp_ge_u32 {s(sW)}, 2")
                a(f"s_cselect_b32 {s(sT2)}, {4*32*3584}, 0")
                a(f"s_sub_u32 {s(sT0)}, {s(sT0)}, {s(sT2)}")
                a(f"s_cmp_ge_u32 {s(sW)}, 2")
                a(f"s_cselect_b32 {s(sT2)}, 1024, 0")
                a(f"s_sub_u32 {s(sT1)}, {s(sT1)}, {s(sT2)}")
            a(f"s_mov_b32 m0, {s(sT1)}")
            a(f"s_add_u32 {s(sT2)}, {s(sT1)}, 4096")
            a(f"buffer_load_dwordx4 {v(vT)}, {s(S_WA,4)}, {s(sT0)} offen {cfg.pol_w} lds")
            a(f"s_mov_b32 m0, {s(sT2)}")
            a(f"s_add_u32 {s(sT1)}, {s(sT1)}, 1024")
            a(f"buffer_load_dwordx4 {v(vT)}, {s(S_WB,4)}, {s(sT0)} offen {cfg.pol_w} lds")
            a(f"s_add_u32 {s(sT0)}, {s(sT0)}, {4*32*3584}")
        a(f"s_lshl_b32 {s(sT0)}, {s(sF)}, 4")
        a(f"s_mul_i32 {s(sT0)}, {s(sT0)}, 896")
        a(f"s_lshl_b32 {s(sT1)}, {s(sW)}, 10")
        a(f"s_add_u32 {s(sT1)}, {s(sT1)}, {WQ_LDS}")
        a(f"s_lshl_b32 {s(sT3)}, {s(sW)}, 6")
        for m in range(4):
            if m == 3:
                a(f"s_cmp_ge_u32 {s(sW)}, 2")
                a(f"s_cselect_b32 {s(sT2)}, 256, 0")
                a(f"s_sub_u32 {s(sT3)}, {s(sT3)}, {s(sT2)}")
                a(f"s_cmp_ge_u32 {s(sW)}, 2")
                a(f"s_cselect_b32 {s(sT2)}, 4096, 0")
                a(f"s_sub_u32 {s(sT1)}, {s(sT1)}, {s(sT2)}")
            a(f"v_add_u32 {v(vT)}, {s(sT3)}, {v(vL)}")
            a(f"v_mul_u32_u24 {v(vT+1)}, 1171, {v(vT)}")
            a(f"v_lshrrev_b32 {v(vT+1)}, 16, {v(vT+1)}")
            a(f"v_mul_u32_u24 {v(vT+2)}, 56, {v(vT+1)}")
            a(f"v_sub_u32 {v(vT)}, {v(vT)}, {v(vT+2)}")
            a(f"v_bfe_u32 {v(vT+2)}, {v(vT+1)}, 1, 2")
            a(f"v_lshlrev_b32 {v(vT+2)}, 1, {v(vT+2)}")
            a(f"v_xor_b32 {v(vT)}, {v(vT)}, {v(vT+2)}")
            a(f"v_mul_u32_u24 {v(vT+1)}, 896, {v(vT+1)}")
            a(f"v_lshl_add_u32 {v(vT+3+m)}, {v(vT)}, 4, {v(vT+1)}")
            a(f"s_mov_b32 m0, {s(sT1)}")
            a(f"s_add_u32 {s(sT1)}, {s(sT1)}, 4096")
            a(f"buffer_load_dwordx4 {v(vT+3+m)}, {s(S_WC,4)}, {s(sT0)} offen {cfg.pol_w} lds")
            a(f"s_add_u32 {s(sT3)}, {s(sT3)}, 256")
        a.label("L_tail_done")
    nw = [0]
    def wait_vm(base, tail_issued):
        if not tail_issued:
            a(f"s_waitcnt vmcnt({base})"); return
        k = nw[0]; nw[0] += 1
        a(f"s_cmp_eq_u32 {s(sROLE)}, 0")
        a(f"s_cbranch_scc1 L_wv{k}_w")
        a(f"s_cmp_eq_u32 {s(sROLE)}, 1")
        a(f"s_cbranch_scc1 L_wv{k}_f")
        a(f"s_waitcnt vmcnt({base})")
        a(f"s_branch L_wv{k}_d")
        a.label(f"L_wv{k}_f")
        a(f"s_waitcnt vmcnt({base + NT[1]})")
        a(f"s_branch L_wv{k}_d")
        a.label(f"L_wv{k}_w")
        a(f"s_waitcnt vmcnt({base + NT[0]})")
        a.label(f"L_wv{k}_d")

    if cfg.tail_pos == 0:
        tail_dma()
    vVA = 32
    a(f"v_lshrrev_b32 {v(vR)}, 2, {v(vN)}")
    a(f"v_and_b32 {v(vC)}, 3, {v(vN)}")
    a(f"v_lshl_add_u32 {v(vT)}, {v(vG)}, 2, {v(vR)}")
    a(f"v_bfe_u32 {v(vT+1)}, {v(vT)}, 1, 2")
    a(f"v_lshlrev_b32 {v(vT+1)}, 5, {v(vT+1)}")
    a(f"v_lshl_add_u32 {v(vT+1)}, {v(vC)}, 3, {v(vT+1)}")
    a(f"v_lshl_add_u32 {v(vT)}, {v(vT)}, 7, {v(vT+1)}")
    a(f"s_lshl_b32 {s(sT0)}, {s(sW)}, 14")
    a(f"s_add_u32 {s(sT0)}, {s(sT0)}, {V_LDS}")
    a(f"v_add_u32 {v(vVA)}, {s(sT0)}, {v(vT)}")
    for db in range(1, 4):
        a(f"v_xor_b32 {v(vVA+db)}, {db << 5}, {v(vVA)}")
    vVF = 64
    vO = 200
    for blk in range(4):
        if blk == 2:
            wait_vm(4, cfg.tail_pos == 0)
            if cfg.tail_pos == 1:
                tail_dma()
        if blk == 3:
            wait_vm(0, cfg.tail_pos <= 1)
            if cfg.tail_pos == 2:
                tail_dma()
            stamp()
        fb = vVF + 16 * (blk & 1)
        for db in range(4):
            a(f"ds_read_b64_tr_b16 {v(fb+4*db,2)}, {v(vVA+db)} offset:{blk*4096}")
            a(f"ds_read_b64_tr_b16 {v(fb+4*db+2,2)}, {v(vVA+db)} offset:{blk*4096+2048}")
        for db in range(4):
            a(f"s_waitcnt lgkmcnt({6-2*db})")
            c = "0" if blk == 0 else v(vO+4*db, 4)
            a(f"v_mfma_f32_16x16x32_bf16 {v(vO+4*db,4)}, {v(fb+4*db,4)}, {v(vP+4*blk,4)}, {c}")
    a(f"v_bfe_u32 {v(vT)}, {v(vN)}, 1, 2")
    a(f"v_cmp_eq_u32 {s(sM1,2)}, 1, {v(vT)}")
    a(f"v_cmp_eq_u32 {s(sM2,2)}, 2, {v(vT)}")
    a(f"v_cmp_eq_u32 {s(sM3,2)}, 3, {v(vT)}")
    a(f"v_and_b32 {v(vT+1)}, 1, {v(vN)}")
    a(f"v_lshlrev_b32 {v(vT+1)}, 14, {v(vT+1)}")
    a(f"v_lshl_add_u32 {v(vT+1)}, {v(vT)}, 5, {v(vT+1)}")
    a(f"v_lshl_add_u32 {v(vT+1)}, {v(vG)}, 3, {v(vT+1)}")
    a(f"s_lshl_b32 {s(sT0)}, {s(sJ)}, 15")
    a(f"s_lshl_b32 {s(sT1)}, {s(sSP)}, 9")
    a(f"s_add_u32 {s(sT0)}, {s(sT0)}, {s(sT1)}")
    a(f"s_lshl_b32 {s(sT1)}, {s(sW)}, 7")
    a(f"s_add_u32 {s(sT0)}, {s(sT0)}, {s(sT1)}")
    a(f"s_add_u32 {s(sT0)}, {s(sT0)}, {WS_O}")
    a(f"v_add_u32 {v(vT+1)}, {s(sT0)}, {v(vT+1)}")
    a(f"v_mov_b32 {v(vT+2)}, {OOB}")
    a(f"v_cmp_gt_u32 vcc, 8, {v(vN)}")
    a(f"v_cndmask_b32 {v(vT+1)}, {v(vT+2)}, {v(vT+1)}, vcc")
    vPo = 64
    for db in range(4):
        a(f"v_cvt_pk_bf16_f32 {v(vPo+2*db)}, {v(vO+4*db)}, {v(vO+4*db+1)}")
        a(f"v_cvt_pk_bf16_f32 {v(vPo+2*db+1)}, {v(vO+4*db+2)}, {v(vO+4*db+3)}")
    for hh in range(2):
        a(f"v_cndmask_b32 {v(vPo+hh)}, {v(vPo+hh)}, {v(vPo+2+hh)}, {s(sM1,2)}")
        a(f"v_cndmask_b32 {v(vPo+hh)}, {v(vPo+hh)}, {v(vPo+4+hh)}, {s(sM2,2)}")
        a(f"v_cndmask_b32 {v(vPo+hh)}, {v(vPo+hh)}, {v(vPo+6+hh)}, {s(sM3,2)}")
        a(f"v_min_u32 {v(vPo+hh)}, -2, {v(vPo+hh)}")
    a(f"buffer_store_dwordx2 {v(vPo,2)}, {v(vT+1)}, {s(S_WS,4)}, 0 offen sc1")
    a(f"s_lshl_b32 {s(sT0)}, {s(sJ)}, 10")
    a(f"s_lshl_b32 {s(sT1)}, {s(sSP)}, 4")
    a(f"s_add_u32 {s(sT0)}, {s(sT0)}, {s(sT1)}")
    a(f"s_add_u32 {s(sT0)}, {s(sT0)}, {WS_ML}")
    a(f"v_lshlrev_b32 {v(vT)}, 9, {v(vL)}")
    a(f"v_add_u32 {v(vT)}, {s(sT0)}, {v(vT)}")
    a(f"s_cmp_eq_u32 {s(sW)}, 0")
    a(f"s_cselect_b32 {s(sT0)}, 2, 0")
    a(f"v_cmp_gt_u32 vcc, {s(sT0)}, {v(vL)}")
    a(f"v_cndmask_b32 {v(vT)}, {v(vT+2)}, {v(vT)}, vcc")
    a(f"v_min_u32 {v(vPo+2)}, -2, {v(vM)}")
    a(f"v_min_u32 {v(vPo+3)}, -2, {v(vLs)}")
    a(f"buffer_store_dwordx2 {v(vPo+2,2)}, {v(vT)}, {s(S_WS,4)}, 0 offen sc1")
    stamp()

    a(f"s_cmp_eq_u32 {s(sROLE)}, 1")
    a("s_cbranch_scc1 L_role_f")
    a(f"s_cmp_eq_u32 {s(sROLE)}, 2")
    a("s_cbranch_scc1 L_role_o")
    a.c("W role")
    vAa = 32
    a(f"v_lshlrev_b32 {v(vAa)}, 9, {v(vN)}")
    a(f"v_lshl_add_u32 {v(vAa)}, {v(vG)}, 4, {v(vAa)}")
    a(f"s_lshl_b32 {s(sT0)}, {s(sH)}, 14")
    a(f"s_lshl_b32 {s(sT1)}, {s(sW)}, 7")
    a(f"s_add_u32 {s(sT0)}, {s(sT0)}, {s(sT1)}")
    a(f"s_add_u32 {s(sT0)}, {s(sT0)}, {WS_O}")
    a(f"v_add_u32 {v(vAa)}, {s(sT0)}, {v(vAa)}")
    a(f"v_add_u32 {v(vAa+1)}, 8192, {v(vAa)}")
    a(f"v_and_b32 {v(vAa+2)}, 31, {v(vL)}")
    a(f"v_lshlrev_b32 {v(vAa+2)}, 4, {v(vAa+2)}")
    a(f"s_lshl_b32 {s(sT0)}, {s(sH)}, 9")
    a(f"s_add_u32 {s(sT0)}, {s(sT0)}, {WS_ML}")
    a(f"v_add_u32 {v(vAa+2)}, {s(sT0)}, {v(vAa+2)}")
    vBw = 36
    a(f"v_bfe_u32 {v(vT)}, {v(vR)}, 1, 1")
    a(f"v_and_b32 {v(vT+1)}, 1, {v(vG)}")
    a(f"v_lshl_or_b32 {v(vT)}, {v(vT+1)}, 1, {v(vT)}")
    a(f"v_lshlrev_b32 {v(vT)}, 5, {v(vT)}")
    a(f"v_lshl_add_u32 {v(vT)}, {v(vC)}, 3, {v(vT)}")
    a(f"v_lshl_add_u32 {v(vT+1)}, {v(vG)}, 3, {v(vR)}")
    a(f"v_lshl_add_u32 {v(vT)}, {v(vT+1)}, 7, {v(vT)}")
    a(f"s_lshl_b32 {s(sT0)}, {s(sW)}, 14")
    a(f"v_add_u32 {v(vBw)}, {s(sT0)}, {v(vT)}")
    for nb in range(1, 4):
        a(f"v_xor_b32 {v(vBw+nb)}, {nb << 5}, {v(vBw)}")
    vBp = 40
    a(f"v_lshlrev_b32 {v(vBp)}, 4, {v(vG)}")
    a("s_waitcnt vmcnt(2)")
    vWF = 64
    for tt in range(2):
        for nb in range(4):
            d = vWF + 16*tt + 4*nb
            a(f"ds_read_b64_tr_b16 {v(d,2)}, {v(vBw+nb)} offset:{tt*4096}")
            a(f"ds_read_b64_tr_b16 {v(d+2,2)}, {v(vBw+nb)} offset:{tt*4096+512}")
    vAF = 96
    vML = 112
    a.label("L_w_retry")
    for sb in range(2):
        for tt in range(2):
            a(f"buffer_load_dwordx4 {v(vAF + 8*sb + 4*tt, 4)}, {v(vAa+sb)}, {s(S_WS,4)}, 0 offen offset:{64*tt} sc1")
    a(f"buffer_load_dwordx2 {v(vML,2)}, {v(vAa+2)}, {s(S_WS,4)}, 0 offen sc1")
    a("s_waitcnt vmcnt(0)")
    a(f"v_max3_u32 {v(vT)}, {v(vAF)}, {v(vAF+1)}, {v(vAF+2)}")
    for i in range(3, 15, 2):
        a(f"v_max3_u32 {v(vT)}, {v(vT)}, {v(vAF+i)}, {v(vAF+i+1)}")
    a(f"v_max3_u32 {v(vT)}, {v(vT)}, {v(vAF+15)}, {v(vML)}")
    a(f"v_max_u32 {v(vT)}, {v(vT)}, {v(vML+1)}")
    a(f"v_cmp_eq_u32 vcc, -1, {v(vT)}")
    a("s_and_b64 vcc, exec, vcc")
    spin_check("L_w_retry", "L_w_ok")
    stamp()
    vD = 116
    a("s_waitcnt lgkmcnt(0)")
    for tt in range(2):
        for sb in range(2):
            for nb in range(4):
                d = vD + 16*sb + 4*nb
                c = "0" if tt == 0 else v(d, 4)
                a(f"v_mfma_f32_16x16x32_bf16 {v(d,4)}, {v(vAF + 8*sb + 4*tt,4)}, {v(vWF + 16*tt + 4*nb,4)}, {c}")
    vMx, vFs, vLl = 148, 149, 150
    a(f"v_mov_b32 {v(vMx)}, {v(vML)}")
    row_allreduce("v_max_f32", vMx)
    a(f"v_mov_b32 {v(vT)}, {v(vMx)}")
    a(f"v_permlane16_swap_b32 {v(vMx)}, {v(vT)}")
    a(f"v_max_f32 {v(vMx)}, {v(vMx)}, {v(vT)}")
    a(f"v_sub_f32 {v(vFs)}, {v(vML)}, {v(vMx)}")
    a(f"v_exp_f32 {v(vFs)}, {v(vFs)}")
    a(f"v_mul_f32 {v(vLl)}, {v(vFs)}, {v(vML+1)}")
    row_allreduce("v_add_f32", vLl)
    a(f"v_mov_b32 {v(vT)}, {v(vLl)}")
    a(f"v_permlane16_swap_b32 {v(vLl)}, {v(vT)}")
    a(f"v_add_f32 {v(vLl)}, {v(vLl)}, {v(vT)}")
    a(f"v_rcp_f32 {v(vLl)}, {v(vLl)}")
    a(f"v_mul_f32 {v(vFs)}, {v(vFs)}, {v(vLl)}")
    vCf = 152
    for sb in range(2):
        for r in range(4):
            a(f"ds_bpermute_b32 {v(vCf+4*sb+r)}, {v(vBp)}, {v(vFs)} offset:{64*sb + 4*r}")
    a("s_waitcnt lgkmcnt(0)")
    vY = 160
    for nb in range(4):
        a(f"v_mul_f32 {v(vY+nb)}, {v(vCf)}, {v(vD+4*nb)}")
        for k in range(1, 8):
            sb, r = k >> 2, k & 3
            a(f"v_fmac_f32 {v(vY+nb)}, {v(vCf+k)}, {v(vD+16*sb+4*nb+r)}")
    a(f"v_permlane16_swap_b32 {v(vY)}, {v(vY+1)}")
    a(f"v_permlane16_swap_b32 {v(vY+2)}, {v(vY+3)}")
    a(f"v_add_f32 {v(vY)}, {v(vY)}, {v(vY+1)}")
    a(f"v_add_f32 {v(vY+2)}, {v(vY+2)}, {v(vY+3)}")
    a(f"v_permlane32_swap_b32 {v(vY)}, {v(vY+2)}")
    a(f"v_add_f32 {v(vY)}, {v(vY)}, {v(vY+2)}")
    a(f"s_lshl_b32 {s(sT0)}, {s(sW)}, 8")
    a(f"s_add_u32 {s(sT0)}, {s(sT0)}, {RED_LDS}")
    a(f"v_lshlrev_b32 {v(vT)}, 2, {v(vL)}")
    a(f"v_add_u32 {v(vT)}, {s(sT0)}, {v(vT)}")
    a(f"ds_write_b32 {v(vT)}, {v(vY)}")
    a("s_waitcnt lgkmcnt(0)")
    a("s_barrier")
    a(f"s_cmp_lg_u32 {s(sW)}, 0")
    a("s_cbranch_scc1 L_end")
    a(f"v_lshlrev_b32 {v(vT)}, 3, {v(vL)}")
    a(f"v_add_u32 {v(vT)}, {RED_LDS}, {v(vT)}")
    for i in range(4):
        a(f"ds_read_b64 {v(vY+2*i,2)}, {v(vT)} offset:{256*i}")
    a(f"s_lshl_b32 {s(sT0)}, {s(sC7)}, 7")
    a(f"v_lshlrev_b32 {v(vT+1)}, 2, {v(vL)}")
    a(f"v_add_u32 {v(vT+1)}, {s(sT0)}, {v(vT+1)}")
    a(f"s_cmp_eq_u32 {s(sH)}, 0")
    a(f"s_cselect_b32 {s(sT1)}, 128, 0")
    a(f"s_add_u32 {s(sT1)}, {s(sT1)}, {s(sT0)}")
    a(f"v_mov_b32 {v(vT+2)}, {OOB}")
    a(f"v_cmp_gt_u32 vcc, {s(sT1)}, {v(vT+1)}")
    a(f"v_cndmask_b32 {v(vT+2)}, {v(vT+2)}, {v(vT+1)}, vcc")
    a(f"buffer_load_dword {v(vT+3)}, {v(vT+2)}, {s(S_X,4)}, 0 offen")
    a("s_waitcnt lgkmcnt(0)")
    a(f"v_add_f32 {v(vY)}, {v(vY)}, {v(vY+2)}")
    a(f"v_add_f32 {v(vY+1)}, {v(vY+1)}, {v(vY+3)}")
    a(f"v_add_f32 {v(vY+4)}, {v(vY+4)}, {v(vY+6)}")
    a(f"v_add_f32 {v(vY+5)}, {v(vY+5)}, {v(vY+7)}")
    a(f"v_add_f32 {v(vY)}, {v(vY)}, {v(vY+4)}")
    a(f"v_add_f32 {v(vY+1)}, {v(vY+1)}, {v(vY+5)}")
    a("s_waitcnt vmcnt(0)")
    a(f"v_lshlrev_b32 {v(vT+4)}, 16, {v(vT+3)}")
    a(f"v_and_b32 {v(vT+5)}, 0xffff0000, {v(vT+3)}")
    a(f"v_add_f32 {v(vY)}, {v(vY)}, {v(vT+4)}")
    a(f"v_add_f32 {v(vY+1)}, {v(vY+1)}, {v(vT+5)}")
    a(f"v_cvt_pk_bf16_f32 {v(vY)}, {v(vY)}, {v(vY+1)}")
    a(f"v_min_u32 {v(vY)}, -2, {v(vY)}")
    a(f"s_mul_i32 {s(sT1)}, {s(sH)}, 896")
    a(f"s_add_u32 {s(sT1)}, {s(sT1)}, {WS_Y}")
    a(f"v_add_u32 {v(vT+1)}, {s(sT1)}, {v(vT+1)}")
    a(f"v_mov_b32 {v(vT+2)}, {OOB}")
    a(f"v_cmp_gt_u32 vcc, 32, {v(vL)}")
    a(f"v_cndmask_b32 {v(vT+1)}, {v(vT+2)}, {v(vT+1)}, vcc")
    a(f"buffer_store_dword {v(vY)}, {v(vT+1)}, {s(S_WS,4)}, 0 offen sc1")
    stamp()
    a("s_branch L_end")

    a.label("L_role_f")
    a.c("F role")
    nstamp[0] = 8
    vYa = 32
    a(f"v_mul_u32_u24 {v(vYa)}, 896, {v(vN)}")
    a(f"v_lshl_add_u32 {v(vYa)}, {v(vG)}, 4, {v(vYa)}")
    a(f"s_lshl_b32 {s(sT0)}, {s(sW)}, 6")
    a(f"s_add_u32 {s(sT0)}, {s(sT0)}, {WS_Y}")
    a(f"v_add_u32 {v(vYa)}, {s(sT0)}, {v(vYa)}")
    a(f"s_cmp_ge_u32 {s(sW)}, 2")
    a(f"s_cselect_b32 {s(sT1)}, 0, 768")
    a(f"v_add_u32 {v(vYa+1)}, {s(sT1)}, {v(vYa)}")
    vBg = 34
    a(f"v_lshl_add_u32 {v(vT)}, {v(vG)}, 3, {v(vR)}")
    a(f"v_lshlrev_b32 {v(vT)}, 5, {v(vT)}")
    a(f"v_lshl_add_u32 {v(vT)}, {v(vC)}, 3, {v(vT)}")
    a(f"v_and_b32 {v(vT+1)}, 1, {v(vG)}")
    a(f"v_lshl_add_u32 {v(vT)}, {v(vT+1)}, 7, {v(vT)}")
    a(f"s_lshl_b32 {s(sT0)}, {s(sW)}, 14")
    a(f"v_add_u32 {v(vBg)}, {s(sT0)}, {v(vT)}")
    a(f"v_xor_b32 {v(vBg+1)}, 128, {v(vBg)}")
    vBd = 36
    a(f"v_lshl_add_u32 {v(vT)}, {v(vG)}, 2, {v(vR)}")
    a(f"v_bfe_u32 {v(vT+1)}, {v(vT)}, 1, 2")
    a(f"v_mul_u32_u24 {v(vT)}, 896, {v(vT)}")
    a(f"v_lshl_add_u32 {v(vT)}, {v(vC)}, 3, {v(vT)}")
    a(f"v_add_u32 {v(vT)}, {WQ_LDS}, {v(vT)}")
    a(f"s_mul_i32 {s(sT0)}, {s(sW)}, 7")
    for jj in range(7):
        a(f"s_add_u32 {s(sT1)}, {s(sT0)}, {jj}")
        a(f"v_xor_b32 {v(vT+2)}, {s(sT1)}, {v(vT+1)}")
        a(f"v_lshl_add_u32 {v(vBd+jj)}, {v(vT+2)}, 5, {v(vT)}")
    vONE = 44
    for i in range(4):
        a(f"v_mov_b32 {v(vONE+i)}, 0x3f803f80")
    a("s_waitcnt vmcnt(2)")
    vGF, vUF = 64, 80
    for m in range(4):
        a(f"ds_read_b64_tr_b16 {v(vGF+4*m,2)}, {v(vBg)} offset:{m*1024}")
        a(f"ds_read_b64_tr_b16 {v(vGF+4*m+2,2)}, {v(vBg+1)} offset:{m*1024}")
        a(f"ds_read_b64_tr_b16 {v(vUF+4*m,2)}, {v(vBg)} offset:{4096+m*1024}")
        a(f"ds_read_b64_tr_b16 {v(vUF+4*m+2,2)}, {v(vBg+1)} offset:{4096+m*1024}")
    a("s_waitcnt lgkmcnt(0)")
    vCSg, vCSu = 96, 100
    for m in range(3):
        a(f"v_mfma_f32_16x16x32_bf16 {v(vCSg,4)}, {v(vONE,4)}, {v(vGF+4*m,4)}, {'0' if m == 0 else v(vCSg,4)}")
        a(f"v_mfma_f32_16x16x32_bf16 {v(vCSu,4)}, {v(vONE,4)}, {v(vUF+4*m,4)}, {'0' if m == 0 else v(vCSu,4)}")
    a(f"s_cmp_ge_u32 {s(sW)}, 2")
    a("s_cbranch_scc1 L_f_cs3")
    a(f"v_mfma_f32_16x16x32_bf16 {v(vCSg,4)}, {v(vONE,4)}, {v(vGF+12,4)}, {v(vCSg,4)}")
    a(f"v_mfma_f32_16x16x32_bf16 {v(vCSu,4)}, {v(vONE,4)}, {v(vUF+12,4)}, {v(vCSu,4)}")
    a.label("L_f_cs3")
    a("s_nop 7")
    a(f"v_and_b32 {v(vT+1)}, 1, {v(vG)}")
    a(f"v_cmp_eq_u32 vcc, 0, {v(vT+1)}")
    a(f"v_cndmask_b32 {v(vT)}, {v(vCSu)}, {v(vCSg)}, vcc")
    a(f"s_lshl_b32 {s(sT0)}, {s(sW)}, 2")
    a(f"s_add_u32 {s(sT1)}, {s(sT0)}, {CS_LDS}")
    a(f"v_and_b32 {v(vT+1)}, 31, {v(vL)}")
    a(f"v_lshlrev_b32 {v(vT+1)}, 4, {v(vT+1)}")
    a(f"v_add_u32 {v(vT+1)}, {s(sT1)}, {v(vT+1)}")
    a(f"ds_write_b32 {v(vT+1)}, {v(vT)}")
    a("s_waitcnt lgkmcnt(0)")
    a("s_barrier")
    vU4 = 48
    a(f"v_and_b32 {v(vT)}, 3, {v(vN)}")
    a(f"v_lshl_add_u32 {v(vU4)}, {v(vG)}, 2, {v(vT)}")
    a(f"v_lshlrev_b32 {v(vU4)}, 4, {v(vU4)}")
    a(f"v_add_u32 {v(vT)}, {CS_LDS}, {v(vU4)}")
    a(f"ds_read_b128 {v(vCSg,4)}, {v(vT)}")
    a(f"ds_read_b128 {v(vCSu,4)}, {v(vT)} offset:256")
    vDF = 104
    for jj in range(7):
        a(f"ds_read_b64_tr_b16 {v(vDF+2*jj,2)}, {v(vBd+jj)}")
    a("s_waitcnt lgkmcnt(0)")
    a(f"v_add_f32 {v(vCSg)}, {v(vCSg)}, {v(vCSg+1)}")
    a(f"v_add_f32 {v(vCSg+2)}, {v(vCSg+2)}, {v(vCSg+3)}")
    a(f"v_add_f32 {v(vCSg)}, {v(vCSg)}, {v(vCSg+2)}")
    a(f"v_add_f32 {v(vCSu)}, {v(vCSu)}, {v(vCSu+1)}")
    a(f"v_add_f32 {v(vCSu+2)}, {v(vCSu+2)}, {v(vCSu+3)}")
    a(f"v_add_f32 {v(vCSu)}, {v(vCSu)}, {v(vCSu+2)}")
    vRw, vRr = 49, 50
    a(f"s_add_u32 {s(sT1)}, {s(sT0)}, {RED_LDS}")
    a(f"v_lshlrev_b32 {v(vRw)}, 4, {v(vL)}")
    a(f"v_add_u32 {v(vRw)}, {s(sT1)}, {v(vRw)}")
    a(f"v_add_u32 {v(vRr)}, {RED_LDS}, {v(vU4)}")
    a(f"v_mov_b32 {v(vRr+1)}, {RED_LDS}")
    vYF = 120
    a.label("L_f_retry")
    for m in range(3):
        a(f"buffer_load_dwordx4 {v(vYF+4*m,4)}, {v(vYa)}, {s(S_WS,4)}, 0 offen offset:{256*m} sc1")
    a(f"buffer_load_dwordx4 {v(vYF+12,4)}, {v(vYa+1)}, {s(S_WS,4)}, 0 offen sc1")
    a("s_waitcnt vmcnt(0)")
    a(f"v_max3_u32 {v(vT)}, {v(vYF)}, {v(vYF+1)}, {v(vYF+2)}")
    for i in range(3, 15, 2):
        a(f"v_max3_u32 {v(vT)}, {v(vT)}, {v(vYF+i)}, {v(vYF+i+1)}")
    a(f"v_max_u32 {v(vT)}, {v(vT)}, {v(vYF+15)}")
    a(f"v_cmp_eq_u32 vcc, -1, {v(vT)}")
    a("s_and_b64 vcc, exec, vcc")
    spin_check("L_f_retry", "L_f_ok")
    stamp()
    vDg, vDu, vGr, vS1 = 136, 140, 144, 148
    a(f"v_mov_b32 {v(vS1)}, 0")
    def f_step(m):
        c0 = (lambda r: "0" if m == 0 else v(r, 4))
        a(f"v_mfma_f32_16x16x32_bf16 {v(vDg,4)}, {v(vYF+4*m,4)}, {v(vGF+4*m,4)}, {c0(vDg)}")
        a(f"v_mfma_f32_16x16x32_bf16 {v(vDu,4)}, {v(vYF+4*m,4)}, {v(vUF+4*m,4)}, {c0(vDu)}")
        a(f"v_mfma_f32_16x16x32_bf16 {v(vGr,4)}, {v(vYF+4*m,4)}, {v(vYF+4*m,4)}, {c0(vGr)}")
        for i in range(4):
            a(f"v_dot2_f32_bf16 {v(vS1)}, {v(vYF+4*m+i)}, {v(vONE)}, {v(vS1)}")
    for m in range(3):
        f_step(m)
    a(f"s_cmp_ge_u32 {s(sW)}, 2")
    a("s_cbranch_scc1 L_f_m3")
    f_step(3)
    a.label("L_f_m3")
    a("s_nop 7")
    for d in (vDg, vDu, vGr):
        a(f"v_add_f32 {v(d)}, {v(d)}, {v(d+1)}")
        a(f"v_add_f32 {v(d+2)}, {v(d+2)}, {v(d+3)}")
        a(f"v_add_f32 {v(d)}, {v(d)}, {v(d+2)}")
    a(f"v_permlane16_swap_b32 {v(vDg)}, {v(vDu)}")
    a(f"v_permlane16_swap_b32 {v(vGr)}, {v(vS1)}")
    a(f"v_add_f32 {v(vDg)}, {v(vDg)}, {v(vDu)}")
    a(f"v_add_f32 {v(vGr)}, {v(vGr)}, {v(vS1)}")
    a(f"v_permlane32_swap_b32 {v(vDg)}, {v(vGr)}")
    a(f"v_add_f32 {v(vDg)}, {v(vDg)}, {v(vGr)}")
    a(f"v_mov_b32 {v(vT)}, {v(vDg)}")
    row_allreduce("v_add_f32", vT)
    a(f"v_cmp_gt_u32 vcc, 2, {v(vG)}")
    a(f"v_cndmask_b32 {v(vT)}, {v(vT)}, {v(vDg)}, vcc")
    a(f"ds_write_b32 {v(vRw)}, {v(vT)}")
    a("s_waitcnt lgkmcnt(0)")
    a("s_barrier")
    vq = 152
    a(f"ds_read_b128 {v(vq,4)}, {v(vRr)}")
    a(f"ds_read_b128 {v(vq+4,4)}, {v(vRr)} offset:256")
    a(f"ds_read_b128 {v(vq+8,4)}, {v(vRr+1)} offset:512")
    a(f"ds_read_b128 {v(vq+12,4)}, {v(vRr+1)} offset:768")
    a("s_waitcnt lgkmcnt(0)")
    for k in range(4):
        d = vq + 4*k
        a(f"v_add_f32 {v(d)}, {v(d)}, {v(d+1)}")
        a(f"v_add_f32 {v(d+2)}, {v(d+2)}, {v(d+3)}")
        a(f"v_add_f32 {v(d)}, {v(d)}, {v(d+2)}")
    vGs, vUs, vS2f, vS1f = vq, vq+4, vq+8, vq+12
    a(f"v_mul_f32 {v(vS1f)}, {f32(1.0/448)}, {v(vS1f)}")
    a(f"v_mul_f32 {v(vS2f)}, {f32(1.0/448)}, {v(vS2f)}")
    a(f"v_fma_f32 {v(vS2f)}, -{v(vS1f)}, {v(vS1f)}, {v(vS2f)}")
    a(f"v_max_f32 {v(vS2f)}, 0, {v(vS2f)}")
    round_bf16(vS2f, vS2f)
    a(f"v_add_f32 {v(vS2f)}, {f32(1e-5)}, {v(vS2f)}")
    round_bf16(vS2f, vS2f)
    a(f"v_sqrt_f32 {v(vS2f)}, {v(vS2f)}")
    round_bf16(vS2f, vS2f)
    a(f"v_rcp_f32 {v(vS2f)}, {v(vS2f)}")
    round_bf16(vS1f, vS1f)
    a(f"v_fma_f32 {v(vGs)}, -{v(vS1f)}, {v(vCSg)}, {v(vGs)}")
    a(f"v_fma_f32 {v(vUs)}, -{v(vS1f)}, {v(vCSu)}, {v(vUs)}")
    a(f"v_mul_f32 {v(vGs)}, {v(vGs)}, {v(vS2f)}")
    a(f"v_mul_f32 {v(vUs)}, {v(vUs)}, {v(vS2f)}")
    round_bf16(vGs, vGs)
    round_bf16(vUs, vUs)
    K0 = -2.0 * 0.7978845608028654 * LOG2E
    a(f"v_mul_f32 {v(vT)}, {v(vGs)}, {v(vGs)}")
    a(f"v_mul_f32 {v(vT)}, {f32(0.044715)}, {v(vT)}")
    a(f"v_add_f32 {v(vT)}, 1.0, {v(vT)}")
    a(f"v_mul_f32 {v(vT)}, {v(vT)}, {v(vGs)}")
    a(f"v_mul_f32 {v(vT)}, {f32(K0)}, {v(vT)}")
    a(f"v_exp_f32 {v(vT)}, {v(vT)}")
    a(f"v_add_f32 {v(vT)}, 1.0, {v(vT)}")
    a(f"v_rcp_f32 {v(vT)}, {v(vT)}")
    a(f"v_mul_f32 {v(vT)}, {v(vT)}, {v(vGs)}")
    round_bf16(vT, vT)
    a(f"v_mul_f32 {v(vT)}, {v(vT)}, {v(vUs)}")
    vHA = 168
    for e in range(4):
        a(f"v_mov_b32_dpp {v(vHA+2+e)}, {v(vT)} quad_perm:[{e},{e},{e},{e}] row_mask:0xf bank_mask:0xf")
    a(f"v_cvt_pk_bf16_f32 {v(vHA)}, {v(vHA+2)}, {v(vHA+3)}")
    a(f"v_cvt_pk_bf16_f32 {v(vHA+1)}, {v(vHA+4)}, {v(vHA+5)}")
    vZo = 176
    for jj in range(7):
        a(f"v_mfma_f32_16x16x16_bf16 {v(vZo+4*jj,4)}, {v(vHA,2)}, {v(vDF+2*jj,2)}, 0")
    a(f"v_cmp_eq_u32 {s(sM1,2)}, 1, {v(vG)}")
    a(f"v_cmp_eq_u32 {s(sM2,2)}, 2, {v(vG)}")
    a(f"v_cmp_eq_u32 {s(sM3,2)}, 3, {v(vG)}")
    a(f"s_mul_i32 {s(sT0)}, {s(sF)}, 1792")
    a(f"s_mul_i32 {s(sT1)}, {s(sW)}, 448")
    a(f"s_add_u32 {s(sT0)}, {s(sT0)}, {s(sT1)}")
    a(f"s_add_u32 {s(sT0)}, {s(sT0)}, {WS_Z}")
    a(f"v_lshlrev_b32 {v(vT+1)}, 2, {v(vL)}")
    a(f"v_add_u32 {v(vT+1)}, {s(sT0)}, {v(vT+1)}")
    a(f"v_add_u32 {v(vT+2)}, 256, {v(vT+1)}")
    a(f"v_mov_b32 {v(vT+3)}, {OOB}")
    a(f"v_cndmask_b32 {v(vT+2)}, {v(vT+2)}, {v(vT+3)}, {s(sM3,2)}")
    a(f"v_cndmask_b32 {v(vT+4)}, {v(vZo)}, {v(vZo+4)}, {s(sM1,2)}")
    a(f"v_cndmask_b32 {v(vT+4)}, {v(vT+4)}, {v(vZo+8)}, {s(sM2,2)}")
    a(f"v_cndmask_b32 {v(vT+4)}, {v(vT+4)}, {v(vZo+12)}, {s(sM3,2)}")
    a(f"v_cndmask_b32 {v(vT+5)}, {v(vZo+16)}, {v(vZo+20)}, {s(sM1,2)}")
    a(f"v_cndmask_b32 {v(vT+5)}, {v(vT+5)}, {v(vZo+24)}, {s(sM2,2)}")
    a(f"v_min_u32 {v(vT+4)}, -2, {v(vT+4)}")
    a(f"v_min_u32 {v(vT+5)}, -2, {v(vT+5)}")
    a(f"buffer_store_dword {v(vT+4)}, {v(vT+1)}, {s(S_WS,4)}, 0 offen sc1")
    a(f"buffer_store_dword {v(vT+5)}, {v(vT+2)}, {s(S_WS,4)}, 0 offen sc1")
    stamp()
    a("s_branch L_end")

    a.label("L_role_o")
    a.c("O role")
    nstamp[0] = 8
    a(f"s_cmp_ge_u32 {s(sO)}, 28")
    a("s_cbranch_scc1 L_end")
    a(f"s_cmp_lg_u32 {s(sW)}, 0")
    a("s_cbranch_scc1 L_end")
    srd(S_OUT, pOUT, 896)
    vq4, vhd = 32, 33
    a(f"v_and_b32 {v(vq4)}, 3, {v(vL)}")
    a(f"v_lshrrev_b32 {v(vhd)}, 2, {v(vL)}")
    a(f"v_mul_u32_u24 {v(vT)}, 896, {v(vhd)}")
    a(f"v_lshl_add_u32 {v(vT)}, {v(vq4)}, 3, {v(vT)}")
    a(f"s_lshl_b32 {s(sT0)}, {s(sO)}, 5")
    a(f"s_add_u32 {s(sT0)}, {s(sT0)}, {WS_Y}")
    a(f"v_add_u32 {v(vT)}, {s(sT0)}, {v(vT)}")
    a(f"v_mul_u32_u24 {v(vT+1)}, 1792, {v(vhd)}")
    a(f"v_lshl_add_u32 {v(vT+1)}, {v(vq4)}, 4, {v(vT+1)}")
    a(f"s_lshl_b32 {s(sT0)}, {s(sO)}, 6")
    a(f"s_add_u32 {s(sT0)}, {s(sT0)}, {WS_Z}")
    a(f"v_add_u32 {v(vT+1)}, {s(sT0)}, {v(vT+1)}")
    vYo = 36
    a.label("L_oy_retry")
    a(f"buffer_load_dwordx2 {v(vYo,2)}, {v(vT)}, {s(S_WS,4)}, 0 offen sc1")
    a("s_waitcnt vmcnt(0)")
    a(f"v_max_u32 {v(vT+2)}, {v(vYo)}, {v(vYo+1)}")
    a(f"v_cmp_eq_u32 vcc, -1, {v(vT+2)}")
    a("s_and_b64 vcc, exec, vcc")
    spin_check("L_oy_retry", "L_oy_ok")
    vH = 40
    a(f"v_lshlrev_b32 {v(vH)}, 16, {v(vYo)}")
    a(f"v_and_b32 {v(vH+1)}, 0xffff0000, {v(vYo)}")
    a(f"v_lshlrev_b32 {v(vH+2)}, 16, {v(vYo+1)}")
    a(f"v_and_b32 {v(vH+3)}, 0xffff0000, {v(vYo+1)}")
    def quadcol_reduce(base):
        for r in (4, 8):
            for i in range(4):
                a(f"v_add_f32_dpp {v(base+i)}, {v(base+i)}, {v(base+i)} row_ror:{r} row_mask:0xf bank_mask:0xf")
        for sw in ("v_permlane16_swap_b32", "v_permlane32_swap_b32"):
            for i in range(4):
                a(f"v_mov_b32 {v(vT+4+i)}, {v(base+i)}")
            for i in range(4):
                a(f"{sw} {v(base+i)}, {v(vT+4+i)}")
            for i in range(4):
                a(f"v_add_f32 {v(base+i)}, {v(base+i)}, {v(vT+4+i)}")
    quadcol_reduce(vH)
    for i in range(4):
        round_bf16(vH+i, vH+i)
    vZ = 48
    a.label("L_oz_retry")
    for i in range(7):
        a(f"s_mov_b32 {s(sT2)}, {16*i*1792}")
        a(f"buffer_load_dwordx4 {v(vZ+4*i,4)}, {v(vT+1)}, {s(S_WS,4)}, {s(sT2)} offen sc1")
    a("s_waitcnt vmcnt(0)")
    a(f"v_max3_u32 {v(vT+2)}, {v(vZ)}, {v(vZ+1)}, {v(vZ+2)}")
    for i in range(3, 27, 2):
        a(f"v_max3_u32 {v(vT+2)}, {v(vT+2)}, {v(vZ+i)}, {v(vZ+i+1)}")
    a(f"v_max_u32 {v(vT+2)}, {v(vT+2)}, {v(vZ+27)}")
    a(f"v_cmp_eq_u32 vcc, -1, {v(vT+2)}")
    a("s_and_b64 vcc, exec, vcc")
    spin_check("L_oz_retry", "L_oz_ok")
    stamp()
    for i in range(1, 7):
        for k in range(4):
            a(f"v_add_f32 {v(vZ+k)}, {v(vZ+k)}, {v(vZ+4*i+k)}")
    quadcol_reduce(vZ)
    for i in range(4):
        round_bf16(vZ+i, vZ+i)
    for i in range(4):
        a(f"v_add_f32 {v(vZ+i)}, {v(vZ+i)}, {v(vH+i)}")
    a(f"v_cvt_pk_bf16_f32 {v(vZ)}, {v(vZ)}, {v(vZ+1)}")
    a(f"v_cvt_pk_bf16_f32 {v(vZ+1)}, {v(vZ+2)}, {v(vZ+3)}")
    a(f"s_lshl_b32 {s(sT0)}, {s(sO)}, 5")
    a(f"v_lshlrev_b32 {v(vT)}, 3, {v(vL)}")
    a(f"v_add_u32 {v(vT)}, {s(sT0)}, {v(vT)}")
    a(f"v_mov_b32 {v(vT+1)}, {OOB}")
    a(f"v_cmp_gt_u32 vcc, 4, {v(vL)}")
    a(f"v_cndmask_b32 {v(vT)}, {v(vT+1)}, {v(vT)}, vcc")
    a(f"buffer_store_dwordx2 {v(vZ,2)}, {v(vT)}, {s(S_OUT,4)}, 0 offen")
    a(f"s_cmp_lg_u32 {s(sO)}, 0")
    a("s_cbranch_scc1 L_o_noepoch")
    a(f"v_mov_b32 {v(vT+2)}, {s(sTAG)}")
    a(f"v_mov_b32 {v(vT+3)}, {WS_EPOCH}")
    a(f"v_cmp_eq_u32 vcc, 0, {v(vL)}")
    a(f"v_cndmask_b32 {v(vT+3)}, {v(vT+1)}, {v(vT+3)}, vcc")
    a(f"buffer_store_dword {v(vT+2)}, {v(vT+3)}, {s(S_WS,4)}, 0 offen")
    a.label("L_o_noepoch")
    stamp()
    a.label("L_end")
    a("s_endpgm")

    body = a.render()
    head = f"""; fused pre-LN attention (sliding window decode) + GEGLU FFN, one launch, 256 workgroups
; @launch grid=(256,1,1) block=(256,1,1) lds={LDS_SIZE}
.amdgcn_target "amdgcn-amd-amdhsa--gfx950"
.text
.globl {NAME}_kernel
.p2align 8
.type {NAME}_kernel,@function
"""
    tail = f"""
.section .rodata,"a"
.p2align 6
.amdhsa_kernel {NAME}_kernel
  .amdhsa_next_free_vgpr 256
  .amdhsa_next_free_sgpr 96
  .amdhsa_accum_offset 256
  .amdhsa_group_segment_fixed_size 0
  .amdhsa_kernarg_size 96
  .amdhsa_user_sgpr_count 2
  .amdhsa_user_sgpr_kernarg_segment_ptr 1
  .amdhsa_system_sgpr_workgroup_id_x 1
  .amdhsa_float_denorm_mode_32 3
.end_amdhsa_kernel
"""
    return head + body + tail

if __name__ == "__main__":
    cfg = Cfg()
    out = sys.argv[1] if len(sys.argv) > 1 else "cdna_kernels/%s.s" % NAME
    for kv in sys.argv[2:]:
        k, val = kv.split("=")
        cur = getattr(cfg, k)
        setattr(cfg, k, type(cur)(int(val)) if isinstance(cur, (bool, int)) else val)
    open(out, "w").write(gen(cfg))
    print("wrote", out)
```

```python
import sys
from asmlib import Asm, v, s

NAME = "sequential_preLN__sliding_block_cached__glu_gated_geglu__decode"

WS_EPOCH = 0
WS_TOK   = 0x1000
WS_QP    = 0x2000
WS_O     = 0x40000
WS_ML    = 0x80000
WS_Y     = 0x84000
WS_Z     = 0x88000
WS_STAMP = 0xC0000
WS_SIZE  = 0x100000
K_LDS  = 0
V_LDS  = 65536
WQ_LDS = 131072
LN_LDS = 147456
Q_LDS  = 151552
PX_LDS = 152704
MX_LDS = 156800
LS_LDS = 157824
RED_LDS = 158848
CS_LDS = RED_LDS + 1024
LDS_SIZE = 161792

LOG2E = 1.4426950408889634

def f32(x):
    import struct
    return "0x%08x" % struct.unpack("<I", struct.pack("<f", x))[0]

class Cfg:
    stamps = False
    dstamps = False
    tail_pos = 1
    spin_max = 200000
    pol_kv = "nt"
    pol_w = "nt"

def gen(cfg):
    a = Asm()
    sB, sW, sJ, sSP, sTAG, sCNT = 2, 3, 4, 5, 6, 7
    S_WS, S_K, S_V, S_WQ, S_X, S_WA, S_WB, S_WC, S_OUT = 8, 12, 16, 20, 24, 28, 32, 36, 40
    sP = 44
    pX, pK, pV, pWQ, pWO, pBX, pG, pU, pD, pOUT, pDBG, pWS = [sP + 2 * i for i in range(12)]
    sT0, sT1, sT2, sT3, sT4, sT5 = 68, 69, 70, 71, 72, 73
    sROLE, sH, sC7, sF, sO = 74, 75, 76, 77, 78
    sM1, sM2, sM3 = 80, 82, 84
    sST = 86
    sKOFF, sVOFF = 90, 91

    vTID, vL, vN, vG = 0, 1, 2, 3
    vT = 4
    nstamp = [0]
    nlab = [0]
    rolebase = [0]

    def stamp():
        if cfg.dstamps:
            i = nstamp[0]; nstamp[0] += 1
            if i >= 8 and False: return
            nlab[0] += 1
            lab = f"L_st{nlab[0]}"
            a(f"s_cmp_lg_u32 {s(sW)}, 0")
            a(f"s_cbranch_scc1 {lab}")
            a(f"s_memrealtime {s(sST,2)}")
            a("s_waitcnt lgkmcnt(0)")
            a(f"v_mov_b32 v250, {s(sST)}")
            a(f"v_mov_b32 v252, {4*(i+1) if i < 8 else 4*(i + 1 + rolebase[0])}")
            a(f"v_cmp_eq_u32 vcc, 0, {v(vL)}")
            a(f"v_mov_b32 v253, 0x7ffffff0")
            a(f"v_cndmask_b32 v252, v253, v252, vcc")
            a(f"buffer_atomic_umax v250, v252, s[92:95], 0 offen")
            a.label(lab)
            return
        if not cfg.stamps: return
        i = nstamp[0]; nstamp[0] += 1
        nlab[0] += 1
        lab = f"L_st{nlab[0]}"
        a(f"s_cmp_lg_u32 {s(sW)}, 0")
        a(f"s_cbranch_scc1 {lab}")
        a(f"s_memrealtime {s(sST,2)}")
        a("s_waitcnt lgkmcnt(0)")
        a(f"v_mov_b32 v250, {s(sST)}")
        a(f"v_mov_b32 v251, {s(sST+1)}")
        a(f"s_lshl_b32 {s(sST)}, {s(sB)}, 7")
        a(f"s_add_u32 {s(sST)}, {s(sST)}, {WS_STAMP + 8*i}")
        a(f"v_mov_b32 v252, {s(sST)}")
        a(f"v_cmp_eq_u32 vcc, 0, {v(vL)}")
        a(f"v_mov_b32 v253, 0x7ffffff0")
        a(f"v_cndmask_b32 v252, v253, v252, vcc")
        a(f"buffer_store_dwordx2 v[250:251], v252, {s(S_WS,4)}, 0 offen")
        a("s_waitcnt vmcnt(63)")
        a.label(lab)

    def srd(dst, ptr, size):
        a(f"s_mov_b32 {s(dst)}, {s(ptr)}")
        a(f"s_and_b32 {s(dst+1)}, {s(ptr+1)}, 0xffff")
        a(f"s_mov_b32 {s(dst+2)}, {size}")
        a(f"s_mov_b32 {s(dst+3)}, 0x20000")

    def row_allreduce(op, x):
        for r in (8, 4, 2, 1):
            a(f"{op}_dpp {v(x)}, {v(x)}, {v(x)} row_ror:{r} row_mask:0xf bank_mask:0xf")
    def g_allreduce(op, x, t):
        a(f"v_mov_b32 {v(t)}, {v(x)}")
        a(f"v_permlane16_swap_b32 {v(x)}, {v(t)}")
        a(f"{op} {v(x)}, {v(x)}, {v(t)}")
        a(f"v_mov_b32 {v(t)}, {v(x)}")
        a(f"v_permlane32_swap_b32 {v(x)}, {v(t)}")
        a(f"{op} {v(x)}, {v(x)}, {v(t)}")
    def wave_allreduce(op, x, t):
        row_allreduce(op, x); g_allreduce(op, x, t)
    def round_bf16(dst, src):
        a(f"v_cvt_pk_bf16_f32 {v(dst)}, {v(src)}, {v(src)}")
        a(f"v_lshlrev_b32 {v(dst)}, 16, {v(dst)}")

    def spin_check(lab_retry, lab_ok):
        a(f"s_cbranch_vccz {lab_ok}")
        a(f"s_sub_u32 {s(sCNT)}, {s(sCNT)}, 1")
        a(f"s_cbranch_scc0 {lab_retry}")
        a.label(lab_ok)

    a.label(f"{NAME}_kernel")
    a(f"s_cmp_ge_u32 {s(sB)}, 256")
    a("s_cbranch_scc1 L_end")
    if cfg.dstamps:
        a(f"s_memrealtime {s(sST+2,2)}")
    a(f"s_load_dwordx16 {s(sP,16)}, s[0:1], 0")
    a(f"s_load_dwordx8 {s(sP+16,8)}, s[0:1], 64")
    a(f"v_lshrrev_b32 {v(vT)}, 6, {v(vTID)}")
    a(f"v_and_b32 {v(vL)}, 63, {v(vTID)}")
    a(f"v_readfirstlane_b32 {s(sW)}, {v(vT)}")
    a(f"v_and_b32 {v(vN)}, 15, {v(vL)}")
    a(f"v_lshrrev_b32 {v(vG)}, 4, {v(vL)}")
    a(f"s_and_b32 {s(sJ)}, {s(sB)}, 7")
    a(f"s_lshr_b32 {s(sSP)}, {s(sB)}, 3")
    a(f"s_mov_b32 {s(sCNT)}, {cfg.spin_max}")
    a(f"s_mov_b32 {s(sROLE)}, 0")
    a(f"s_cmp_ge_u32 {s(sSP)}, 14")
    a(f"s_cselect_b32 {s(sROLE)}, 1, 0")
    a(f"s_cmp_ge_u32 {s(sSP)}, 28")
    a(f"s_cselect_b32 {s(sROLE)}, 2, {s(sROLE)}")
    a(f"s_cmp_ge_u32 {s(sSP)}, 7")
    a(f"s_cselect_b32 {s(sT0)}, 1, 0")
    a(f"s_lshl_b32 {s(sH)}, {s(sJ)}, 1")
    a(f"s_add_u32 {s(sH)}, {s(sH)}, {s(sT0)}")
    a(f"s_mul_i32 {s(sT0)}, {s(sT0)}, 7")
    a(f"s_sub_u32 {s(sC7)}, {s(sSP)}, {s(sT0)}")
    a(f"s_mul_i32 {s(sF)}, {s(sJ)}, 14")
    a(f"s_add_u32 {s(sF)}, {s(sF)}, {s(sSP)}")
    a(f"s_sub_u32 {s(sF)}, {s(sF)}, 14")
    a(f"s_sub_u32 {s(sO)}, {s(sSP)}, 28")
    a(f"s_lshl_b32 {s(sO)}, {s(sO)}, 3")
    a(f"s_add_u32 {s(sO)}, {s(sO)}, {s(sJ)}")
    a(f"s_lshl_b32 {s(sT0)}, {s(sJ)}, 23")
    a(f"s_lshl_b32 {s(sT1)}, {s(sSP)}, 16")
    a(f"s_add_u32 {s(sVOFF)}, {s(sT0)}, {s(sT1)}")
    a(f"s_add_u32 {s(sVOFF)}, {s(sVOFF)}, {12288*512}")
    a(f"s_lshl_b32 {s(sT0)}, {s(sW)}, 14")
    a(f"s_add_u32 {s(sKOFF)}, {s(sVOFF)}, {s(sT0)}")

    vXo, vClr, vWQo, vK0, vVo = 16, 17, 18, 20, 19
    a(f"v_lshlrev_b32 {v(vXo)}, 4, {v(vL)}")
    a(f"v_lshrrev_b32 {v(vT)}, 3, {v(vL)}")
    a(f"v_and_b32 {v(vT+1)}, 7, {v(vL)}")
    a(f"v_bfe_u32 {v(vT+2)}, {v(vT)}, 1, 1")
    a(f"s_and_b32 {s(sT0)}, {s(sW)}, 1")
    a(f"s_lshl_b32 {s(sT0)}, {s(sT0)}, 2")
    a(f"v_lshlrev_b32 {v(vT+2)}, 1, {v(vT+2)}")
    a(f"v_or_b32 {v(vT+2)}, {s(sT0)}, {v(vT+2)}")
    a(f"v_xor_b32 {v(vT+2)}, {v(vT+1)}, {v(vT+2)}")
    a(f"v_lshlrev_b32 {v(vT+2)}, 4, {v(vT+2)}")
    a(f"v_lshl_add_u32 {v(vWQo)}, {v(vT)}, 13, {v(vT+2)}")
    a(f"v_bfe_u32 {v(vT+2)}, {v(vT)}, 1, 2")
    a(f"v_lshlrev_b32 {v(vT+2)}, 1, {v(vT+2)}")
    a(f"v_xor_b32 {v(vT+2)}, {v(vT+1)}, {v(vT+2)}")
    a(f"v_lshlrev_b32 {v(vT+2)}, 4, {v(vT+2)}")
    a(f"v_lshl_add_u32 {v(vVo)}, {v(vT)}, 9, {v(vT+2)}")
    a(f"s_lshl_b32 {s(sT0)}, {s(sW)}, 7")
    a(f"v_add_u32 {v(vVo)}, {s(sT0)}, {v(vVo)}")
    a(f"v_lshrrev_b32 {v(vT)}, 5, {v(vL)}")
    a(f"v_and_b32 {v(vT+1)}, 31, {v(vL)}")
    a(f"v_xor_b32 {v(vT+1)}, {v(vT+1)}, {v(vT)}")
    a(f"v_lshlrev_b32 {v(vT+1)}, 4, {v(vT+1)}")
    a(f"v_lshl_add_u32 {v(vK0)}, {v(vT)}, 9, {v(vT+1)}")
    for jj in range(1, 8):
        a(f"v_xor_b32 {v(vK0+jj)}, {(2*jj) << 4}, {v(vK0)}")
    OOB = 0x7ffffff0
    a(f"v_mov_b32 {v(vClr)}, {OOB}")
    a(f"s_cmp_eq_u32 {s(sW)}, 0")
    a("s_cbranch_scc1 L_clr_w0")
    a(f"s_cmp_eq_u32 {s(sW)}, 3")
    a("s_cbranch_scc1 L_clr_w3")
    a(f"s_cmp_lg_u32 {s(sROLE)}, 1")
    a("s_cbranch_scc1 L_clr_done")
    a(f"s_mul_i32 {s(sT0)}, {s(sF)}, 1792")
    a(f"s_sub_u32 {s(sT1)}, {s(sW)}, 1")
    a(f"s_mul_i32 {s(sT1)}, {s(sT1)}, 896")
    a(f"s_add_u32 {s(sT0)}, {s(sT0)}, {s(sT1)}")
    a(f"s_add_u32 {s(sT0)}, {s(sT0)}, {WS_Z}")
    a(f"v_add_u32 {v(vT)}, {s(sT0)}, {v(vXo)}")
    a(f"v_cmp_gt_u32 vcc, 56, {v(vL)}")
    a(f"v_cndmask_b32 {v(vClr)}, {v(vClr)}, {v(vT)}, vcc")
    a("s_branch L_clr_done")
    a.label("L_clr_w0")
    a(f"v_lshrrev_b32 {v(vT)}, 5, {v(vL)}")
    a(f"v_and_b32 {v(vT+1)}, 31, {v(vL)}")
    a(f"v_lshlrev_b32 {v(vT+1)}, 4, {v(vT+1)}")
    a(f"v_lshl_add_u32 {v(vClr)}, {v(vT)}, 14, {v(vT+1)}")
    a(f"s_lshl_b32 {s(sT0)}, {s(sJ)}, 15")
    a(f"s_lshl_b32 {s(sT1)}, {s(sSP)}, 9")
    a(f"s_add_u32 {s(sT0)}, {s(sT0)}, {s(sT1)}")
    a(f"s_add_u32 {s(sT0)}, {s(sT0)}, {WS_O}")
    a(f"v_add_u32 {v(vClr)}, {s(sT0)}, {v(vClr)}")
    a("s_branch L_clr_done")
    a.label("L_clr_w3")
    a(f"s_lshl_b32 {s(sT0)}, {s(sJ)}, 10")
    a(f"s_lshl_b32 {s(sT1)}, {s(sSP)}, 4")
    a(f"s_add_u32 {s(sT0)}, {s(sT0)}, {s(sT1)}")
    a(f"s_add_u32 {s(sT0)}, {s(sT0)}, {WS_ML}")
    a(f"v_lshlrev_b32 {v(vT)}, 9, {v(vL)}")
    a(f"v_add_u32 {v(vT)}, {s(sT0)}, {v(vT)}")
    a(f"v_cmp_gt_u32 vcc, 2, {v(vL)}")
    a(f"v_cndmask_b32 {v(vClr)}, {v(vClr)}, {v(vT)}, vcc")
    a(f"s_cmp_lg_u32 {s(sROLE)}, 0")
    a("s_cbranch_scc1 L_clr_done")
    a(f"s_mul_i32 {s(sT0)}, {s(sH)}, 896")
    a(f"s_lshl_b32 {s(sT1)}, {s(sC7)}, 7")
    a(f"s_add_u32 {s(sT0)}, {s(sT0)}, {s(sT1)}")
    a(f"s_add_u32 {s(sT0)}, {s(sT0)}, {WS_Y - 128}")
    a(f"v_add_u32 {v(vT)}, {s(sT0)}, {v(vXo)}")
    a(f"v_lshrrev_b32 {v(vT+1)}, 3, {v(vL)}")
    a(f"v_cmp_eq_u32 vcc, 1, {v(vT+1)}")
    a(f"v_cndmask_b32 {v(vClr)}, {v(vClr)}, {v(vT)}, vcc")
    a.label("L_clr_done")
    vONES = 28
    for i in range(4):
        a(f"v_mov_b32 {v(vONES+i)}, -1")

    a("s_waitcnt lgkmcnt(0)")
    a(f"s_load_dword {s(sTAG)}, {s(pWS,2)}, {WS_EPOCH}")
    if cfg.dstamps:
        srd(92, pDBG, 256)
        a(f"s_cmp_lg_u32 {s(sW)}, 0")
        a("s_cbranch_scc1 L_st_start")
        a(f"s_not_b32 {s(sST+2)}, {s(sST+2)}")
        a(f"v_mov_b32 v250, {s(sST+2)}")
        a(f"v_mov_b32 v252, 0")
        a(f"v_cmp_eq_u32 vcc, 0, {v(vL)}")
        a(f"v_mov_b32 v253, 0x7ffffff0")
        a(f"v_cndmask_b32 v252, v253, v252, vcc")
        a(f"buffer_atomic_umax v250, v252, s[92:95], 0 offen")
        a.label("L_st_start")
    srd(S_X, pX, 896)
    srd(S_WS, pWS, WS_SIZE)
    srd(S_WQ, pWQ, 448*4096*2)
    vX = 32
    a(f"buffer_load_dwordx4 {v(vX,4)}, {v(vXo)}, {s(S_X,4)}, 0 offen")
    a(f"buffer_store_dwordx4 {v(vONES,4)}, {v(vClr)}, {s(S_WS,4)}, 0 offen sc1")
    a(f"s_lshr_b32 {s(sT0)}, {s(sSP)}, 3")
    a(f"s_mul_i32 {s(sT0)}, {s(sT0)}, {112*8192}")
    a(f"s_and_b32 {s(sT1)}, {s(sSP)}, 7")
    a(f"s_lshl_b32 {s(sT2)}, {s(sJ)}, 3")
    a(f"s_add_u32 {s(sT1)}, {s(sT1)}, {s(sT2)}")
    a(f"s_lshl_b32 {s(sT1)}, {s(sT1)}, 7")
    a(f"s_add_u32 {s(sT0)}, {s(sT0)}, {s(sT1)}")
    a(f"s_lshl_b32 {s(sT1)}, {s(sW)}, 16")
    a(f"s_add_u32 {s(sT0)}, {s(sT0)}, {s(sT1)}")
    a(f"s_lshl_b32 {s(sT1)}, {s(sW)}, 10")
    a(f"s_add_u32 {s(sT1)}, {s(sT1)}, {WQ_LDS}")
    for m in range(4):
        if m == 3:
            a(f"s_cmp_ge_u32 {s(sW)}, 2")
            a(f"s_cselect_b32 {s(sT2)}, {4*8*8192}, 0")
            a(f"s_sub_u32 {s(sT0)}, {s(sT0)}, {s(sT2)}")
            a(f"s_cselect_b32 {s(sT2)}, 4096, 0") if False else None
            a(f"s_cmp_ge_u32 {s(sW)}, 2")
            a(f"s_cselect_b32 {s(sT2)}, 4096, 0")
            a(f"s_sub_u32 {s(sT1)}, {s(sT1)}, {s(sT2)}")
        a(f"s_mov_b32 m0, {s(sT1)}")
        a(f"s_add_u32 {s(sT1)}, {s(sT1)}, 4096")
        a(f"buffer_load_dwordx4 {v(vWQo)}, {s(S_WQ,4)}, {s(sT0)} offen {cfg.pol_w} lds")
        a(f"s_add_u32 {s(sT0)}, {s(sT0)}, {4*8*8192}")
    srd(S_K, pK, 8*16384*512)
    a(f"s_lshl_b32 {s(sT1)}, {s(sW)}, 14")
    a(f"s_add_u32 {s(sT1)}, {s(sT1)}, {K_LDS}") if K_LDS else None
    a(f"s_mov_b32 {s(sT0)}, {s(sKOFF)}")
    for jj in range(16):
        if jj % 4 == 0:
            a(f"s_mov_b32 m0, {s(sT1)}")
            a(f"s_add_u32 {s(sT1)}, {s(sT1)}, 4096")
        a(f"buffer_load_dwordx4 {v(vK0 + jj % 8)}, {s(S_K,4)}, {s(sT0)} offen offset:{(jj%4)*1024} {cfg.pol_kv} lds")
        if jj % 4 == 3:
            a(f"s_add_u32 {s(sT0)}, {s(sT0)}, 4096")
    srd(S_V, pV, 8*16384*512)
    stamp()

    a.c("LN1")
    vXf = 36
    a("s_waitcnt vmcnt(21)")
    for i in range(4):
        a(f"v_lshlrev_b32 {v(vXf+2*i)}, 16, {v(vX+i)}")
        a(f"v_and_b32 {v(vXf+2*i+1)}, 0xffff0000, {v(vX+i)}")
    vS, vS2, vTmp, vMu, vD = 44, 45, 46, 47, 48
    a(f"v_add_f32 {v(vS)}, {v(vXf)}, {v(vXf+1)}")
    for i in range(2, 8):
        a(f"v_add_f32 {v(vS)}, {v(vS)}, {v(vXf+i)}")
    wave_allreduce("v_add_f32", vS, vTmp)
    a(f"v_mul_f32 {v(vMu)}, {f32(1.0/448)}, {v(vS)}")
    for i in range(8):
        a(f"v_sub_f32 {v(vD+i)}, {v(vXf+i)}, {v(vMu)}")
    a(f"v_mul_f32 {v(vS2)}, {v(vD)}, {v(vD)}")
    for i in range(1, 8):
        a(f"v_fmac_f32 {v(vS2)}, {v(vD+i)}, {v(vD+i)}")
    a(f"v_cmp_gt_u32 vcc, 56, {v(vL)}")
    a(f"v_cndmask_b32 {v(vS2)}, 0, {v(vS2)}, vcc")
    wave_allreduce("v_add_f32", vS2, vTmp)
    a(f"v_mul_f32 {v(vS2)}, {f32(1.0/448)}, {v(vS2)}")
    round_bf16(vS2, vS2)
    a(f"v_add_f32 {v(vS2)}, {f32(1e-5)}, {v(vS2)}")
    round_bf16(vS2, vS2)
    a(f"v_sqrt_f32 {v(vS2)}, {v(vS2)}")
    round_bf16(vS2, vS2)
    a(f"v_rcp_f32 {v(vS2)}, {v(vS2)}")
    round_bf16(vMu, vMu)
    for i in range(8):
        a(f"v_sub_f32 {v(vD+i)}, {v(vXf+i)}, {v(vMu)}")
    for i in range(4):
        a(f"v_cvt_pk_bf16_f32 {v(vX+i)}, {v(vD+2*i)}, {v(vD+2*i+1)}")
    for i in range(4):
        a(f"v_lshlrev_b32 {v(vD+2*i)}, 16, {v(vX+i)}")
        a(f"v_and_b32 {v(vD+2*i+1)}, 0xffff0000, {v(vX+i)}")
    for i in range(8):
        a(f"v_mul_f32 {v(vD+i)}, {v(vD+i)}, {v(vS2)}")
    for i in range(4):
        a(f"v_cvt_pk_bf16_f32 {v(vX+i)}, {v(vD+2*i)}, {v(vD+2*i+1)}")
    a(f"s_lshl_b32 {s(sT0)}, {s(sW)}, 10")
    a(f"s_add_u32 {s(sT0)}, {s(sT0)}, {LN_LDS}")
    a(f"v_add_u32 {v(vT)}, {s(sT0)}, {v(vXo)}")
    a(f"ds_write_b128 {v(vT)}, {v(vX,4)}")
    vQA = 36
    a(f"s_lshr_b32 {s(sT1)}, {s(sSP)}, 3")
    a(f"s_mul_i32 {s(sT1)}, {s(sT1)}, 224")
    a(f"s_add_u32 {s(sT0)}, {s(sT0)}, {s(sT1)}")
    a(f"v_lshlrev_b32 {v(vT+1)}, 4, {v(vG)}")
    a(f"v_add_u32 {v(vT+1)}, {s(sT0)}, {v(vT+1)}")
    a(f"v_lshlrev_b32 {v(vT+2)}, 3, {v(vG)}")
    a(f"v_add_u32 {v(vT+2)}, {s(sT0)}, {v(vT+2)}")
    a("s_waitcnt lgkmcnt(0)")
    for t in range(3):
        a(f"ds_read_b128 {v(vQA+4*t,4)}, {v(vT+1)} offset:{64*t}")
    a(f"ds_read_b64 {v(vQA+12,2)}, {v(vT+2)} offset:192")
    vR, vC = 50, 51
    a(f"v_lshrrev_b32 {v(vR)}, 2, {v(vN)}")
    a(f"v_and_b32 {v(vC)}, 3, {v(vN)}")
    vBA, vBA2 = 52, 53
    a(f"v_bfe_u32 {v(vT)}, {v(vR)}, 1, 1")
    a(f"v_and_b32 {v(vT+1)}, 1, {v(vG)}")
    a(f"v_lshl_or_b32 {v(vT)}, {v(vT+1)}, 1, {v(vT)}")
    a(f"v_xor_b32 {v(vT)}, {s(sW)}, {v(vT)}")
    a(f"v_lshlrev_b32 {v(vT)}, 5, {v(vT)}")
    a(f"v_lshl_add_u32 {v(vT)}, {v(vC)}, 3, {v(vT)}")
    a(f"v_lshl_add_u32 {v(vT+1)}, {v(vG)}, 3, {v(vR)}")
    a(f"v_lshl_add_u32 {v(vBA)}, {v(vT+1)}, 7, {v(vT)}")
    a(f"v_add_u32 {v(vBA)}, {WQ_LDS}, {v(vBA)}")
    a(f"v_bfe_u32 {v(vT)}, {v(vR)}, 1, 1")
    a(f"v_lshrrev_b32 {v(vT+1)}, 1, {v(vG)}")
    a(f"v_lshl_or_b32 {v(vT)}, {v(vT+1)}, 1, {v(vT)}")
    a(f"v_xor_b32 {v(vT)}, {s(sW)}, {v(vT)}")
    a(f"v_lshlrev_b32 {v(vT)}, 5, {v(vT)}")
    a(f"v_lshl_add_u32 {v(vT)}, {v(vC)}, 3, {v(vT)}")
    a(f"v_lshl_add_u32 {v(vT+1)}, {v(vG)}, 2, {v(vR)}")
    a(f"v_lshl_add_u32 {v(vBA2)}, {v(vT+1)}, 7, {v(vT)}")
    a(f"v_add_u32 {v(vBA2)}, {WQ_LDS + 96*128}, {v(vBA2)}")
    a("s_waitcnt vmcnt(16)")
    a("s_barrier")
    stamp()
    vQB = 56
    for t in range(3):
        a(f"ds_read_b64_tr_b16 {v(vQB+4*t,2)}, {v(vBA)} offset:{4096*t}")
        a(f"ds_read_b64_tr_b16 {v(vQB+4*t+2,2)}, {v(vBA)} offset:{4096*t+512}")
    a(f"ds_read_b64_tr_b16 {v(vQB+12,2)}, {v(vBA2)}")
    vAcc = 72
    a("s_waitcnt lgkmcnt(0)")
    a(f"v_mfma_f32_16x16x32_bf16 {v(vAcc,4)}, {v(vQA,4)}, {v(vQB,4)}, 0")
    a(f"v_mfma_f32_16x16x32_bf16 {v(vAcc,4)}, {v(vQA+4,4)}, {v(vQB+4,4)}, {v(vAcc,4)}")
    a(f"v_mfma_f32_16x16x32_bf16 {v(vAcc,4)}, {v(vQA+8,4)}, {v(vQB+8,4)}, {v(vAcc,4)}")
    a(f"v_mfma_f32_16x16x16_bf16 {v(vAcc+4,4)}, {v(vQA+12,2)}, {v(vQB+12,2)}, 0")
    a(f"s_lshr_b32 {s(sT0)}, {s(sSP)}, 3")
    a(f"s_lshl_b32 {s(sT0)}, {s(sT0)}, 15")
    a(f"s_and_b32 {s(sT1)}, {s(sSP)}, 7")
    a(f"s_lshl_b32 {s(sT2)}, {s(sJ)}, 3")
    a(f"s_add_u32 {s(sT1)}, {s(sT1)}, {s(sT2)}")
    a(f"s_lshl_b32 {s(sT1)}, {s(sT1)}, 9")
    a(f"s_add_u32 {s(sT0)}, {s(sT0)}, {s(sT1)}")
    a(f"s_lshl_b32 {s(sT1)}, {s(sW)}, 7")
    a(f"s_add_u32 {s(sT0)}, {s(sT0)}, {s(sT1)}")
    a(f"s_add_u32 {s(sT0)}, {s(sT0)}, {WS_QP}")
    a(f"v_lshlrev_b32 {v(vT)}, 3, {v(vL)}")
    a(f"v_add_u32 {v(vT)}, {s(sT0)}, {v(vT)}")
    a(f"v_mov_b32 {v(vT+1)}, {OOB}")
    a(f"v_cmp_gt_u32 vcc, 16, {v(vL)}")
    a(f"v_cndmask_b32 {v(vT)}, {v(vT+1)}, {v(vT)}, vcc")
    a("s_waitcnt lgkmcnt(0)")
    a(f"s_mul_i32 {s(sTAG)}, {s(sTAG)}, 1664525")
    a(f"s_add_u32 {s(sTAG)}, {s(sTAG)}, 1013904223")
    a(f"v_add_f32 {v(vAcc)}, {v(vAcc)}, {v(vAcc+4)}")
    a(f"v_mov_b32 {v(vAcc+1)}, {s(sTAG)}")
    a(f"buffer_store_dwordx2 {v(vAcc,2)}, {v(vT)}, {s(S_WS,4)}, 0 offen sc1")
    a(f"s_lshl_b32 {s(sT0)}, {s(sB)}, 4")
    a(f"s_lshl_b32 {s(sT1)}, {s(sW)}, 2")
    a(f"s_add_u32 {s(sT0)}, {s(sT0)}, {s(sT1)}")
    a(f"s_add_u32 {s(sT0)}, {s(sT0)}, {WS_TOK}")
    a(f"v_mov_b32 {v(vT+2)}, {s(sT0)}")
    a(f"v_cmp_eq_u32 vcc, 0, {v(vL)}")
    a(f"v_cndmask_b32 {v(vT+2)}, {v(vT+1)}, {v(vT+2)}, vcc")
    a(f"buffer_store_dword {v(vAcc+1)}, {v(vT+2)}, {s(S_WS,4)}, 0 offen sc1")
    stamp()
    a(f"s_lshl_b32 {s(sT1)}, {s(sW)}, 14")
    a(f"s_add_u32 {s(sT1)}, {s(sT1)}, {V_LDS}")
    a(f"s_mov_b32 {s(sT0)}, {s(sVOFF)}")
    def v_dma(n):
        for i in range(n):
            a(f"s_mov_b32 m0, {s(sT1)}")
            a(f"s_add_u32 {s(sT1)}, {s(sT1)}, 1024")
            a(f"buffer_load_dwordx4 {v(vVo)}, {s(S_V,4)}, {s(sT0)} offen {cfg.pol_kv} lds")
            a(f"s_add_u32 {s(sT0)}, {s(sT0)}, 4096")
    v_dma(8)
    a(f"s_mov_b32 {s(sT4)}, {s(sT0)}")
    a(f"s_mov_b32 {s(sT5)}, {s(sT1)}")
    vGa, vGt = 36, 37
    a(f"s_lshl_b32 {s(sT2)}, {s(sJ)}, 12")
    a(f"s_add_u32 {s(sT2)}, {s(sT2)}, {WS_QP}")
    a(f"v_lshlrev_b32 {v(vGt)}, 4, {v(vTID)}")
    a(f"v_add_u32 {v(vGa)}, {s(sT2)}, {v(vGt)}")
    a(f"v_add_u32 {v(vGt)}, {WS_TOK}, {v(vGt)}")
    vGq = 40
    a("s_waitcnt vmcnt(10)")
    stamp()
    def h1_loads():
        for kq in range(4):
            a(f"s_mov_b32 {s(sT2)}, {kq*32768}")
            a(f"buffer_load_dwordx4 {v(vGq+4*kq,4)}, {v(vGa)}, {s(S_WS,4)}, {s(sT2)} offen sc1")
        a(f"buffer_load_dwordx4 {v(vGq+16,4)}, {v(vGt)}, {s(S_WS,4)}, 0 offen sc1")
    h1_loads()
    a(f"s_mov_b32 {s(sT0)}, {s(sT4)}")
    a(f"s_mov_b32 {s(sT1)}, {s(sT5)}")
    v_dma(8)
    a("s_waitcnt vmcnt(8)")
    a("s_branch L_h1_check")
    a.label("L_h1_retry")
    h1_loads()
    a("s_waitcnt vmcnt(0)")
    a.label("L_h1_check")
    vE = 60
    a(f"v_xor_b32 {v(vE)}, {s(sTAG)}, {v(vGq+1)}")
    for r in [3, 5, 7, 9, 11, 13, 15, 16, 17, 18, 19]:
        a(f"v_xor_b32 {v(vE+1)}, {s(sTAG)}, {v(vGq+r)}")
        a(f"v_or_b32 {v(vE)}, {v(vE)}, {v(vE+1)}")
    a(f"v_cmp_ne_u32 vcc, 0, {v(vE)}")
    a("s_and_b64 vcc, exec, vcc")
    spin_check("L_h1_retry", "L_h1_ok")
    stamp()
    a(f"v_add_f32 {v(vGq)}, {v(vGq)}, {v(vGq+4)}")
    a(f"v_add_f32 {v(vGq+8)}, {v(vGq+8)}, {v(vGq+12)}")
    a(f"v_add_f32 {v(vGq+2)}, {v(vGq+2)}, {v(vGq+6)}")
    a(f"v_add_f32 {v(vGq+10)}, {v(vGq+10)}, {v(vGq+14)}")
    a(f"v_add_f32 {v(vGq)}, {v(vGq)}, {v(vGq+8)}")
    a(f"v_add_f32 {v(vGq+2)}, {v(vGq+2)}, {v(vGq+10)}")
    a(f"v_cvt_pk_bf16_f32 {v(vGq)}, {v(vGq)}, {v(vGq+2)}")
    a(f"v_lshlrev_b32 {v(vT)}, 2, {v(vTID)}")
    a(f"v_add_u32 {v(vT)}, {Q_LDS}, {v(vT)}")
    a(f"ds_write_b32 {v(vT)}, {v(vGq)}")
    vKA = 32
    a(f"v_and_b32 {v(vT)}, 3, {v(vN)}")
    a(f"v_xor_b32 {v(vT)}, {v(vG)}, {v(vT)}")
    a(f"v_lshrrev_b32 {v(vT+1)}, 2, {v(vN)}")
    a(f"v_lshl_or_b32 {v(vT)}, {v(vT+1)}, 2, {v(vT)}")
    a(f"v_lshlrev_b32 {v(vT)}, 4, {v(vT)}")
    a(f"v_lshl_add_u32 {v(vT)}, {v(vN)}, 9, {v(vT)}")
    a(f"s_lshl_b32 {s(sT0)}, {s(sW)}, 14")
    a(f"v_add_u32 {v(vKA)}, {s(sT0)}, {v(vT)}")
    for tt in range(1, 4):
        a(f"v_xor_b32 {v(vKA+tt)}, {tt << 6}, {v(vKA)}")
    a(f"v_and_b32 {v(vT)}, 1, {v(vN)}")
    a(f"v_lshlrev_b32 {v(vT)}, 9, {v(vT)}")
    a(f"v_lshl_add_u32 {v(vT)}, {v(vG)}, 4, {v(vT)}")
    a(f"v_add_u32 {v(vT)}, {Q_LDS}, {v(vT)}")
    vKF = 64
    for kb in range(2):
        for t in range(8):
            a(f"ds_read_b128 {v(vKF + 4*(8*kb+t), 4)}, {v(vKA + (t & 3))} offset:{kb*8192 + (t >> 2)*256}")
    a("s_waitcnt lgkmcnt(0)")
    a("s_barrier")
    vQF = 128
    for t in range(8):
        a(f"ds_read_b128 {v(vQF+4*t,4)}, {v(vT)} offset:{64*t}")
    vSc = 160
    for t in range(8):
        a(f"s_waitcnt lgkmcnt({7-t})")
        for kb in range(2):
            c = "0" if t == 0 else v(vSc+4*kb, 4)
            a(f"v_mfma_f32_16x16x32_bf16 {v(vSc+4*kb,4)}, {v(vKF + 4*(8*kb+t),4)}, {v(vQF+4*t,4)}, {c}")
    vPk = 168
    vZ = 172
    for i in range(4):
        a(f"v_cvt_pk_bf16_f32 {v(vPk+i)}, {v(vSc+2*i)}, {v(vSc+2*i+1)}")
    for i in range(4):
        a(f"v_lshlrev_b32 {v(vZ+2*i)}, 16, {v(vPk+i)}")
        a(f"v_and_b32 {v(vZ+2*i+1)}, 0xffff0000, {v(vPk+i)}")
    vM, vMt, vLs = 180, 181, 182
    a(f"v_max3_f32 {v(vM)}, {v(vZ)}, {v(vZ+1)}, {v(vZ+2)}")
    a(f"v_max3_f32 {v(vM)}, {v(vM)}, {v(vZ+3)}, {v(vZ+4)}")
    a(f"v_max3_f32 {v(vM)}, {v(vM)}, {v(vZ+5)}, {v(vZ+6)}")
    a(f"v_max_f32 {v(vM)}, {v(vM)}, {v(vZ+7)}")
    g_allreduce("v_max_f32", vM, vMt)
    vLa = 183
    a(f"v_lshlrev_b32 {v(vLa)}, 2, {v(vL)}")
    a(f"s_lshl_b32 {s(sT0)}, {s(sW)}, 8")
    a(f"v_add_u32 {v(vT)}, {s(sT0)}, {v(vLa)}")
    a(f"ds_write_b32 {v(vT)}, {v(vM)} offset:{MX_LDS - 131072}") if False else None
    a(f"v_add_u32 {v(vT+1)}, {MX_LDS}, {v(vT)}")
    a(f"ds_write_b32 {v(vT+1)}, {v(vM)}")
    a(f"v_add_u32 {v(vT+2)}, {MX_LDS}, {v(vLa)}")
    a("s_waitcnt lgkmcnt(0)")
    a("s_barrier")
    for i in range(4):
        a(f"ds_read_b32 {v(vT+4+i)}, {v(vT+2)} offset:{256*i}")
    a("s_waitcnt lgkmcnt(0)")
    a(f"v_max3_f32 {v(vM)}, {v(vT+4)}, {v(vT+5)}, {v(vT+6)}")
    a(f"v_max_f32 {v(vM)}, {v(vM)}, {v(vT+7)}")
    CSC = LOG2E / 16.0
    a(f"s_mov_b32 {s(sT0)}, {f32(CSC)}")
    for i in range(8):
        a(f"v_sub_f32 {v(vZ+i)}, {v(vZ+i)}, {v(vM)}")
    for i in range(8):
        a(f"v_mul_f32 {v(vZ+i)}, {s(sT0)}, {v(vZ+i)}")
    for i in range(8):
        a(f"v_exp_f32 {v(vZ+i)}, {v(vZ+i)}")
    a(f"v_mul_f32 {v(vM)}, {s(sT0)}, {v(vM)}")
    a(f"v_add_f32 {v(vLs)}, {v(vZ)}, {v(vZ+1)}")
    for i in range(2, 8):
        a(f"v_add_f32 {v(vLs)}, {v(vLs)}, {v(vZ+i)}")
    for i in range(4):
        a(f"v_cvt_pk_bf16_f32 {v(vPk+i)}, {v(vZ+2*i)}, {v(vZ+2*i+1)}")
    g_allreduce("v_add_f32", vLs, vMt)
    a(f"s_lshl_b32 {s(sT1)}, {s(sW)}, 10")
    a(f"v_lshlrev_b32 {v(vT+3)}, 4, {v(vL)}")
    a(f"v_add_u32 {v(vT+3)}, {PX_LDS}, {v(vT+3)}")
    a(f"v_add_u32 {v(vT+4)}, {s(sT1)}, {v(vT+3)}")
    a(f"ds_write_b128 {v(vT+4)}, {v(vPk,4)}")
    a(f"v_add_u32 {v(vT+1)}, {LS_LDS - MX_LDS}, {v(vT+1)}")
    a(f"ds_write_b32 {v(vT+1)}, {v(vLs)}")
    a(f"v_add_u32 {v(vT+2)}, {LS_LDS - MX_LDS}, {v(vT+2)}")
    a("s_waitcnt lgkmcnt(0)")
    a("s_barrier")
    vP = 184
    for i in range(4):
        a(f"ds_read_b128 {v(vP+4*i,4)}, {v(vT+3)} offset:{1024*i}")
    for i in range(4):
        a(f"ds_read_b32 {v(vT+4+i)}, {v(vT+2)} offset:{256*i}")
    a("s_waitcnt lgkmcnt(0)")
    a(f"v_add_f32 {v(vLs)}, {v(vT+4)}, {v(vT+5)}")
    a(f"v_add_f32 {v(vT+6)}, {v(vT+6)}, {v(vT+7)}")
    a(f"v_add_f32 {v(vLs)}, {v(vLs)}, {v(vT+6)}")
    stamp()

    NT = {0: 8, 1: 12, 2: 0}
    def tail_dma():
        a(f"s_cmp_eq_u32 {s(sROLE)}, 2")
        a("s_cbranch_scc1 L_tail_done")
        a(f"s_cmp_eq_u32 {s(sROLE)}, 1")
        a("s_cbranch_scc1 L_tail_f")
        srd(S_WA, pWO, 4096*448*2)
        a(f"v_lshrrev_b32 {v(vT)}, 3, {v(vL)}")
        a(f"v_and_b32 {v(vT+1)}, 7, {v(vL)}")
        a(f"v_bfe_u32 {v(vT+2)}, {v(vT)}, 1, 1")
        a(f"v_lshlrev_b32 {v(vT+2)}, 1, {v(vT+2)}")
        a(f"v_xor_b32 {v(vT+1)}, {v(vT+1)}, {v(vT+2)}")
        a(f"v_xor_b32 {v(vT+2)}, 4, {v(vT+1)}")
        a(f"v_mul_u32_u24 {v(vT)}, 896, {v(vT)}")
        a(f"v_lshl_add_u32 {v(vT+1)}, {v(vT+1)}, 4, {v(vT)}")
        a(f"v_lshl_add_u32 {v(vT+2)}, {v(vT+2)}, 4, {v(vT)}")
        a(f"s_lshl_b32 {s(sT0)}, {s(sH)}, 8")
        a(f"s_lshl_b32 {s(sT1)}, {s(sW)}, 6")
        a(f"s_add_u32 {s(sT0)}, {s(sT0)}, {s(sT1)}")
        a(f"s_mul_i32 {s(sT0)}, {s(sT0)}, 896")
        a(f"s_lshl_b32 {s(sT1)}, {s(sC7)}, 7")
        a(f"s_add_u32 {s(sT0)}, {s(sT0)}, {s(sT1)}")
        a(f"s_lshl_b32 {s(sT1)}, {s(sW)}, 14")
        for i in range(8):
            a(f"s_mov_b32 m0, {s(sT1)}")
            a(f"s_add_u32 {s(sT1)}, {s(sT1)}, 1024")
            a(f"buffer_load_dwordx4 {v(vT+1+(i&1))}, {s(S_WA,4)}, {s(sT0)} offen {cfg.pol_w} lds")
            a(f"s_add_u32 {s(sT0)}, {s(sT0)}, {8*896}")
        a("s_branch L_tail_done")
        a.label("L_tail_f")
        srd(S_WA, pG, 448*1792*2)
        srd(S_WB, pU, 448*1792*2)
        srd(S_WC, pD, 1792*448*2)
        a(f"v_lshrrev_b32 {v(vT)}, 1, {v(vL)}")
        a(f"v_bfe_u32 {v(vT+1)}, {v(vT)}, 3, 1")
        a(f"v_lshlrev_b32 {v(vT+1)}, 2, {v(vT+1)}")
        a(f"v_xor_b32 {v(vT)}, {v(vT)}, {v(vT+1)}")
        a(f"v_mul_u32_u24 {v(vT)}, 3584, {v(vT)}")
        a(f"v_and_b32 {v(vT+1)}, 1, {v(vL)}")
        a(f"v_lshl_add_u32 {v(vT)}, {v(vT+1)}, 4, {v(vT)}")
        a(f"s_mul_i32 {s(sT0)}, {s(sW)}, {32*3584}")
        a(f"s_lshl_b32 {s(sT1)}, {s(sF)}, 5")
        a(f"s_add_u32 {s(sT0)}, {s(sT0)}, {s(sT1)}")
        a(f"s_lshl_b32 {s(sT1)}, {s(sW)}, 14")
        for m in range(4):
            if m == 3:
                a(f"s_cmp_ge_u32 {s(sW)}, 2")
                a(f"s_cselect_b32 {s(sT2)}, {4*32*3584}, 0")
                a(f"s_sub_u32 {s(sT0)}, {s(sT0)}, {s(sT2)}")
                a(f"s_cmp_ge_u32 {s(sW)}, 2")
                a(f"s_cselect_b32 {s(sT2)}, 1024, 0")
                a(f"s_sub_u32 {s(sT1)}, {s(sT1)}, {s(sT2)}")
            a(f"s_mov_b32 m0, {s(sT1)}")
            a(f"s_add_u32 {s(sT2)}, {s(sT1)}, 4096")
            a(f"buffer_load_dwordx4 {v(vT)}, {s(S_WA,4)}, {s(sT0)} offen {cfg.pol_w} lds")
            a(f"s_mov_b32 m0, {s(sT2)}")
            a(f"s_add_u32 {s(sT1)}, {s(sT1)}, 1024")
            a(f"buffer_load_dwordx4 {v(vT)}, {s(S_WB,4)}, {s(sT0)} offen {cfg.pol_w} lds")
            a(f"s_add_u32 {s(sT0)}, {s(sT0)}, {4*32*3584}")
        a(f"s_lshl_b32 {s(sT0)}, {s(sF)}, 4")
        a(f"s_mul_i32 {s(sT0)}, {s(sT0)}, 896")
        a(f"s_lshl_b32 {s(sT1)}, {s(sW)}, 10")
        a(f"s_add_u32 {s(sT1)}, {s(sT1)}, {WQ_LDS}")
        a(f"s_lshl_b32 {s(sT3)}, {s(sW)}, 6")
        for m in range(4):
            if m == 3:
                a(f"s_cmp_ge_u32 {s(sW)}, 2")
                a(f"s_cselect_b32 {s(sT2)}, 256, 0")
                a(f"s_sub_u32 {s(sT3)}, {s(sT3)}, {s(sT2)}")
                a(f"s_cmp_ge_u32 {s(sW)}, 2")
                a(f"s_cselect_b32 {s(sT2)}, 4096, 0")
                a(f"s_sub_u32 {s(sT1)}, {s(sT1)}, {s(sT2)}")
            a(f"v_add_u32 {v(vT)}, {s(sT3)}, {v(vL)}")
            a(f"v_mul_u32_u24 {v(vT+1)}, 1171, {v(vT)}")
            a(f"v_lshrrev_b32 {v(vT+1)}, 16, {v(vT+1)}")
            a(f"v_mul_u32_u24 {v(vT+2)}, 56, {v(vT+1)}")
            a(f"v_sub_u32 {v(vT)}, {v(vT)}, {v(vT+2)}")
            a(f"v_bfe_u32 {v(vT+2)}, {v(vT+1)}, 1, 2")
            a(f"v_lshlrev_b32 {v(vT+2)}, 1, {v(vT+2)}")
            a(f"v_xor_b32 {v(vT)}, {v(vT)}, {v(vT+2)}")
            a(f"v_mul_u32_u24 {v(vT+1)}, 896, {v(vT+1)}")
            a(f"v_lshl_add_u32 {v(vT+3+m)}, {v(vT)}, 4, {v(vT+1)}")
            a(f"s_mov_b32 m0, {s(sT1)}")
            a(f"s_add_u32 {s(sT1)}, {s(sT1)}, 4096")
            a(f"buffer_load_dwordx4 {v(vT+3+m)}, {s(S_WC,4)}, {s(sT0)} offen {cfg.pol_w} lds")
            a(f"s_add_u32 {s(sT3)}, {s(sT3)}, 256")
        a.label("L_tail_done")
    nw = [0]
    def wait_vm(base, tail_issued):
        if not tail_issued:
            a(f"s_waitcnt vmcnt({base})"); return
        k = nw[0]; nw[0] += 1
        a(f"s_cmp_eq_u32 {s(sROLE)}, 0")
        a(f"s_cbranch_scc1 L_wv{k}_w")
        a(f"s_cmp_eq_u32 {s(sROLE)}, 1")
        a(f"s_cbranch_scc1 L_wv{k}_f")
        a(f"s_waitcnt vmcnt({base})")
        a(f"s_branch L_wv{k}_d")
        a.label(f"L_wv{k}_f")
        a(f"s_waitcnt vmcnt({base + NT[1]})")
        a(f"s_branch L_wv{k}_d")
        a.label(f"L_wv{k}_w")
        a(f"s_waitcnt vmcnt({base + NT[0]})")
        a.label(f"L_wv{k}_d")

    if cfg.tail_pos == 0:
        tail_dma()
    vVA = 32
    a(f"v_lshrrev_b32 {v(vR)}, 2, {v(vN)}")
    a(f"v_and_b32 {v(vC)}, 3, {v(vN)}")
    a(f"v_lshl_add_u32 {v(vT)}, {v(vG)}, 2, {v(vR)}")
    a(f"v_bfe_u32 {v(vT+1)}, {v(vT)}, 1, 2")
    a(f"v_lshlrev_b32 {v(vT+1)}, 5, {v(vT+1)}")
    a(f"v_lshl_add_u32 {v(vT+1)}, {v(vC)}, 3, {v(vT+1)}")
    a(f"v_lshl_add_u32 {v(vT)}, {v(vT)}, 7, {v(vT+1)}")
    a(f"s_lshl_b32 {s(sT0)}, {s(sW)}, 14")
    a(f"s_add_u32 {s(sT0)}, {s(sT0)}, {V_LDS}")
    a(f"v_add_u32 {v(vVA)}, {s(sT0)}, {v(vT)}")
    for db in range(1, 4):
        a(f"v_xor_b32 {v(vVA+db)}, {db << 5}, {v(vVA)}")
    vVF = 64
    vO = 200
    for blk in range(4):
        if blk == 2:
            wait_vm(4, cfg.tail_pos == 0)
            if cfg.tail_pos == 1:
                tail_dma()
        if blk == 3:
            wait_vm(0, cfg.tail_pos <= 1)
            if cfg.tail_pos == 2:
                tail_dma()
            stamp()
        fb = vVF + 16 * (blk & 1)
        for db in range(4):
            a(f"ds_read_b64_tr_b16 {v(fb+4*db,2)}, {v(vVA+db)} offset:{blk*4096}")
            a(f"ds_read_b64_tr_b16 {v(fb+4*db+2,2)}, {v(vVA+db)} offset:{blk*4096+2048}")
        for db in range(4):
            a(f"s_waitcnt lgkmcnt({6-2*db})")
            c = "0" if blk == 0 else v(vO+4*db, 4)
            a(f"v_mfma_f32_16x16x32_bf16 {v(vO+4*db,4)}, {v(fb+4*db,4)}, {v(vP+4*blk,4)}, {c}")
    a(f"v_bfe_u32 {v(vT)}, {v(vN)}, 1, 2")
    a(f"v_cmp_eq_u32 {s(sM1,2)}, 1, {v(vT)}")
    a(f"v_cmp_eq_u32 {s(sM2,2)}, 2, {v(vT)}")
    a(f"v_cmp_eq_u32 {s(sM3,2)}, 3, {v(vT)}")
    a(f"v_and_b32 {v(vT+1)}, 1, {v(vN)}")
    a(f"v_lshlrev_b32 {v(vT+1)}, 14, {v(vT+1)}")
    a(f"v_lshl_add_u32 {v(vT+1)}, {v(vT)}, 5, {v(vT+1)}")
    a(f"v_lshl_add_u32 {v(vT+1)}, {v(vG)}, 3, {v(vT+1)}")
    a(f"s_lshl_b32 {s(sT0)}, {s(sJ)}, 15")
    a(f"s_lshl_b32 {s(sT1)}, {s(sSP)}, 9")
    a(f"s_add_u32 {s(sT0)}, {s(sT0)}, {s(sT1)}")
    a(f"s_lshl_b32 {s(sT1)}, {s(sW)}, 7")
    a(f"s_add_u32 {s(sT0)}, {s(sT0)}, {s(sT1)}")
    a(f"s_add_u32 {s(sT0)}, {s(sT0)}, {WS_O}")
    a(f"v_add_u32 {v(vT+1)}, {s(sT0)}, {v(vT+1)}")
    a(f"v_mov_b32 {v(vT+2)}, {OOB}")
    a(f"v_cmp_gt_u32 vcc, 8, {v(vN)}")
    a(f"v_cndmask_b32 {v(vT+1)}, {v(vT+2)}, {v(vT+1)}, vcc")
    vPo = 64
    for db in range(4):
        a(f"v_cvt_pk_bf16_f32 {v(vPo+2*db)}, {v(vO+4*db)}, {v(vO+4*db+1)}")
        a(f"v_cvt_pk_bf16_f32 {v(vPo+2*db+1)}, {v(vO+4*db+2)}, {v(vO+4*db+3)}")
    for hh in range(2):
        a(f"v_cndmask_b32 {v(vPo+hh)}, {v(vPo+hh)}, {v(vPo+2+hh)}, {s(sM1,2)}")
        a(f"v_cndmask_b32 {v(vPo+hh)}, {v(vPo+hh)}, {v(vPo+4+hh)}, {s(sM2,2)}")
        a(f"v_cndmask_b32 {v(vPo+hh)}, {v(vPo+hh)}, {v(vPo+6+hh)}, {s(sM3,2)}")
        a(f"v_min_u32 {v(vPo+hh)}, -2, {v(vPo+hh)}")
    a(f"buffer_store_dwordx2 {v(vPo,2)}, {v(vT+1)}, {s(S_WS,4)}, 0 offen sc1")
    a(f"s_lshl_b32 {s(sT0)}, {s(sJ)}, 10")
    a(f"s_lshl_b32 {s(sT1)}, {s(sSP)}, 4")
    a(f"s_add_u32 {s(sT0)}, {s(sT0)}, {s(sT1)}")
    a(f"s_add_u32 {s(sT0)}, {s(sT0)}, {WS_ML}")
    a(f"v_lshlrev_b32 {v(vT)}, 9, {v(vL)}")
    a(f"v_add_u32 {v(vT)}, {s(sT0)}, {v(vT)}")
    a(f"s_cmp_eq_u32 {s(sW)}, 0")
    a(f"s_cselect_b32 {s(sT0)}, 2, 0")
    a(f"v_cmp_gt_u32 vcc, {s(sT0)}, {v(vL)}")
    a(f"v_cndmask_b32 {v(vT)}, {v(vT+2)}, {v(vT)}, vcc")
    a(f"v_min_u32 {v(vPo+2)}, -2, {v(vM)}")
    a(f"v_min_u32 {v(vPo+3)}, -2, {v(vLs)}")
    a(f"buffer_store_dwordx2 {v(vPo+2,2)}, {v(vT)}, {s(S_WS,4)}, 0 offen sc1")
    stamp()

    a(f"s_cmp_eq_u32 {s(sROLE)}, 1")
    a("s_cbranch_scc1 L_role_f")
    a(f"s_cmp_eq_u32 {s(sROLE)}, 2")
    a("s_cbranch_scc1 L_role_o")
    a.c("W role")
    vAa = 32
    a(f"v_lshlrev_b32 {v(vAa)}, 9, {v(vN)}")
    a(f"v_lshl_add_u32 {v(vAa)}, {v(vG)}, 4, {v(vAa)}")
    a(f"s_lshl_b32 {s(sT0)}, {s(sH)}, 14")
    a(f"s_lshl_b32 {s(sT1)}, {s(sW)}, 7")
    a(f"s_add_u32 {s(sT0)}, {s(sT0)}, {s(sT1)}")
    a(f"s_add_u32 {s(sT0)}, {s(sT0)}, {WS_O}")
    a(f"v_add_u32 {v(vAa)}, {s(sT0)}, {v(vAa)}")
    a(f"v_add_u32 {v(vAa+1)}, 8192, {v(vAa)}")
    a(f"v_and_b32 {v(vAa+2)}, 31, {v(vL)}")
    a(f"v_lshlrev_b32 {v(vAa+2)}, 4, {v(vAa+2)}")
    a(f"s_lshl_b32 {s(sT0)}, {s(sH)}, 9")
    a(f"s_add_u32 {s(sT0)}, {s(sT0)}, {WS_ML}")
    a(f"v_add_u32 {v(vAa+2)}, {s(sT0)}, {v(vAa+2)}")
    vBw = 36
    a(f"v_bfe_u32 {v(vT)}, {v(vR)}, 1, 1")
    a(f"v_and_b32 {v(vT+1)}, 1, {v(vG)}")
    a(f"v_lshl_or_b32 {v(vT)}, {v(vT+1)}, 1, {v(vT)}")
    a(f"v_lshlrev_b32 {v(vT)}, 5, {v(vT)}")
    a(f"v_lshl_add_u32 {v(vT)}, {v(vC)}, 3, {v(vT)}")
    a(f"v_lshl_add_u32 {v(vT+1)}, {v(vG)}, 3, {v(vR)}")
    a(f"v_lshl_add_u32 {v(vT)}, {v(vT+1)}, 7, {v(vT)}")
    a(f"s_lshl_b32 {s(sT0)}, {s(sW)}, 14")
    a(f"v_add_u32 {v(vBw)}, {s(sT0)}, {v(vT)}")
    for nb in range(1, 4):
        a(f"v_xor_b32 {v(vBw+nb)}, {nb << 5}, {v(vBw)}")
    vBp = 40
    a(f"v_lshlrev_b32 {v(vBp)}, 4, {v(vG)}")
    a("s_waitcnt vmcnt(2)")
    vWF = 64
    for tt in range(2):
        for nb in range(4):
            d = vWF + 16*tt + 4*nb
            a(f"ds_read_b64_tr_b16 {v(d,2)}, {v(vBw+nb)} offset:{tt*4096}")
            a(f"ds_read_b64_tr_b16 {v(d+2,2)}, {v(vBw+nb)} offset:{tt*4096+512}")
    vAF = 96
    vML = 112
    a.label("L_w_retry")
    for sb in range(2):
        for tt in range(2):
            a(f"buffer_load_dwordx4 {v(vAF + 8*sb + 4*tt, 4)}, {v(vAa+sb)}, {s(S_WS,4)}, 0 offen offset:{64*tt} sc1")
    a(f"buffer_load_dwordx2 {v(vML,2)}, {v(vAa+2)}, {s(S_WS,4)}, 0 offen sc1")
    a("s_waitcnt vmcnt(0)")
    a(f"v_max3_u32 {v(vT)}, {v(vAF)}, {v(vAF+1)}, {v(vAF+2)}")
    for i in range(3, 15, 2):
        a(f"v_max3_u32 {v(vT)}, {v(vT)}, {v(vAF+i)}, {v(vAF+i+1)}")
    a(f"v_max3_u32 {v(vT)}, {v(vT)}, {v(vAF+15)}, {v(vML)}")
    a(f"v_max_u32 {v(vT)}, {v(vT)}, {v(vML+1)}")
    a(f"v_cmp_eq_u32 vcc, -1, {v(vT)}")
    a("s_and_b64 vcc, exec, vcc")
    spin_check("L_w_retry", "L_w_ok")
    stamp()
    vD = 116
    a("s_waitcnt lgkmcnt(0)")
    for tt in range(2):
        for sb in range(2):
            for nb in range(4):
                d = vD + 16*sb + 4*nb
                c = "0" if tt == 0 else v(d, 4)
                a(f"v_mfma_f32_16x16x32_bf16 {v(d,4)}, {v(vAF + 8*sb + 4*tt,4)}, {v(vWF + 16*tt + 4*nb,4)}, {c}")
    vMx, vFs, vLl = 148, 149, 150
    a(f"v_mov_b32 {v(vMx)}, {v(vML)}")
    row_allreduce("v_max_f32", vMx)
    a(f"v_mov_b32 {v(vT)}, {v(vMx)}")
    a(f"v_permlane16_swap_b32 {v(vMx)}, {v(vT)}")
    a(f"v_max_f32 {v(vMx)}, {v(vMx)}, {v(vT)}")
    a(f"v_sub_f32 {v(vFs)}, {v(vML)}, {v(vMx)}")
    a(f"v_exp_f32 {v(vFs)}, {v(vFs)}")
    a(f"v_mul_f32 {v(vLl)}, {v(vFs)}, {v(vML+1)}")
    row_allreduce("v_add_f32", vLl)
    a(f"v_mov_b32 {v(vT)}, {v(vLl)}")
    a(f"v_permlane16_swap_b32 {v(vLl)}, {v(vT)}")
    a(f"v_add_f32 {v(vLl)}, {v(vLl)}, {v(vT)}")
    a(f"v_rcp_f32 {v(vLl)}, {v(vLl)}")
    a(f"v_mul_f32 {v(vFs)}, {v(vFs)}, {v(vLl)}")
    vCf = 152
    for sb in range(2):
        for r in range(4):
            a(f"ds_bpermute_b32 {v(vCf+4*sb+r)}, {v(vBp)}, {v(vFs)} offset:{64*sb + 4*r}")
    a("s_waitcnt lgkmcnt(0)")
    vY = 160
    for nb in range(4):
        a(f"v_mul_f32 {v(vY+nb)}, {v(vCf)}, {v(vD+4*nb)}")
        for k in range(1, 8):
            sb, r = k >> 2, k & 3
            a(f"v_fmac_f32 {v(vY+nb)}, {v(vCf+k)}, {v(vD+16*sb+4*nb+r)}")
    a(f"v_permlane16_swap_b32 {v(vY)}, {v(vY+1)}")
    a(f"v_permlane16_swap_b32 {v(vY+2)}, {v(vY+3)}")
    a(f"v_add_f32 {v(vY)}, {v(vY)}, {v(vY+1)}")
    a(f"v_add_f32 {v(vY+2)}, {v(vY+2)}, {v(vY+3)}")
    a(f"v_permlane32_swap_b32 {v(vY)}, {v(vY+2)}")
    a(f"v_add_f32 {v(vY)}, {v(vY)}, {v(vY+2)}")
    a(f"s_lshl_b32 {s(sT0)}, {s(sW)}, 8")
    a(f"s_add_u32 {s(sT0)}, {s(sT0)}, {RED_LDS}")
    a(f"v_lshlrev_b32 {v(vT)}, 2, {v(vL)}")
    a(f"v_add_u32 {v(vT)}, {s(sT0)}, {v(vT)}")
    a(f"ds_write_b32 {v(vT)}, {v(vY)}")
    a("s_waitcnt lgkmcnt(0)")
    a("s_barrier")
    a(f"s_cmp_lg_u32 {s(sW)}, 0")
    a("s_cbranch_scc1 L_end")
    a(f"v_lshlrev_b32 {v(vT)}, 3, {v(vL)}")
    a(f"v_add_u32 {v(vT)}, {RED_LDS}, {v(vT)}")
    for i in range(4):
        a(f"ds_read_b64 {v(vY+2*i,2)}, {v(vT)} offset:{256*i}")
    a(f"s_lshl_b32 {s(sT0)}, {s(sC7)}, 7")
    a(f"v_lshlrev_b32 {v(vT+1)}, 2, {v(vL)}")
    a(f"v_add_u32 {v(vT+1)}, {s(sT0)}, {v(vT+1)}")
    a(f"s_cmp_eq_u32 {s(sH)}, 0")
    a(f"s_cselect_b32 {s(sT1)}, 128, 0")
    a(f"s_add_u32 {s(sT1)}, {s(sT1)}, {s(sT0)}")
    a(f"v_mov_b32 {v(vT+2)}, {OOB}")
    a(f"v_cmp_gt_u32 vcc, {s(sT1)}, {v(vT+1)}")
    a(f"v_cndmask_b32 {v(vT+2)}, {v(vT+2)}, {v(vT+1)}, vcc")
    a(f"buffer_load_dword {v(vT+3)}, {v(vT+2)}, {s(S_X,4)}, 0 offen")
    a("s_waitcnt lgkmcnt(0)")
    a(f"v_add_f32 {v(vY)}, {v(vY)}, {v(vY+2)}")
    a(f"v_add_f32 {v(vY+1)}, {v(vY+1)}, {v(vY+3)}")
    a(f"v_add_f32 {v(vY+4)}, {v(vY+4)}, {v(vY+6)}")
    a(f"v_add_f32 {v(vY+5)}, {v(vY+5)}, {v(vY+7)}")
    a(f"v_add_f32 {v(vY)}, {v(vY)}, {v(vY+4)}")
    a(f"v_add_f32 {v(vY+1)}, {v(vY+1)}, {v(vY+5)}")
    a("s_waitcnt vmcnt(0)")
    a(f"v_lshlrev_b32 {v(vT+4)}, 16, {v(vT+3)}")
    a(f"v_and_b32 {v(vT+5)}, 0xffff0000, {v(vT+3)}")
    a(f"v_add_f32 {v(vY)}, {v(vY)}, {v(vT+4)}")
    a(f"v_add_f32 {v(vY+1)}, {v(vY+1)}, {v(vT+5)}")
    a(f"v_cvt_pk_bf16_f32 {v(vY)}, {v(vY)}, {v(vY+1)}")
    a(f"v_min_u32 {v(vY)}, -2, {v(vY)}")
    a(f"s_mul_i32 {s(sT1)}, {s(sH)}, 896")
    a(f"s_add_u32 {s(sT1)}, {s(sT1)}, {WS_Y}")
    a(f"v_add_u32 {v(vT+1)}, {s(sT1)}, {v(vT+1)}")
    a(f"v_mov_b32 {v(vT+2)}, {OOB}")
    a(f"v_cmp_gt_u32 vcc, 32, {v(vL)}")
    a(f"v_cndmask_b32 {v(vT+1)}, {v(vT+2)}, {v(vT+1)}, vcc")
    a(f"buffer_store_dword {v(vY)}, {v(vT+1)}, {s(S_WS,4)}, 0 offen sc1")
    stamp()
    a("s_branch L_end")

    a.label("L_role_f")
    a.c("F role")
    nstamp[0] = 8
    rolebase[0] = 2
    vYa = 32
    a(f"v_mul_u32_u24 {v(vYa)}, 896, {v(vN)}")
    a(f"v_lshl_add_u32 {v(vYa)}, {v(vG)}, 4, {v(vYa)}")
    a(f"s_lshl_b32 {s(sT0)}, {s(sW)}, 6")
    a(f"s_add_u32 {s(sT0)}, {s(sT0)}, {WS_Y}")
    a(f"v_add_u32 {v(vYa)}, {s(sT0)}, {v(vYa)}")
    a(f"s_cmp_ge_u32 {s(sW)}, 2")
    a(f"s_cselect_b32 {s(sT1)}, 0, 768")
    a(f"v_add_u32 {v(vYa+1)}, {s(sT1)}, {v(vYa)}")
    vBg = 34
    a(f"v_lshl_add_u32 {v(vT)}, {v(vG)}, 3, {v(vR)}")
    a(f"v_lshlrev_b32 {v(vT)}, 5, {v(vT)}")
    a(f"v_lshl_add_u32 {v(vT)}, {v(vC)}, 3, {v(vT)}")
    a(f"v_and_b32 {v(vT+1)}, 1, {v(vG)}")
    a(f"v_lshl_add_u32 {v(vT)}, {v(vT+1)}, 7, {v(vT)}")
    a(f"s_lshl_b32 {s(sT0)}, {s(sW)}, 14")
    a(f"v_add_u32 {v(vBg)}, {s(sT0)}, {v(vT)}")
    a(f"v_xor_b32 {v(vBg+1)}, 128, {v(vBg)}")
    vBd = 36
    a(f"v_lshl_add_u32 {v(vT)}, {v(vG)}, 2, {v(vR)}")
    a(f"v_bfe_u32 {v(vT+1)}, {v(vT)}, 1, 2")
    a(f"v_mul_u32_u24 {v(vT)}, 896, {v(vT)}")
    a(f"v_lshl_add_u32 {v(vT)}, {v(vC)}, 3, {v(vT)}")
    a(f"v_add_u32 {v(vT)}, {WQ_LDS}, {v(vT)}")
    a(f"s_mul_i32 {s(sT0)}, {s(sW)}, 7")
    for jj in range(7):
        a(f"s_add_u32 {s(sT1)}, {s(sT0)}, {jj}")
        a(f"v_xor_b32 {v(vT+2)}, {s(sT1)}, {v(vT+1)}")
        a(f"v_lshl_add_u32 {v(vBd+jj)}, {v(vT+2)}, 5, {v(vT)}")
    vONE = 44
    for i in range(4):
        a(f"v_mov_b32 {v(vONE+i)}, 0x3f803f80")
    a("s_waitcnt vmcnt(2)")
    vGF, vUF = 64, 80
    for m in range(4):
        a(f"ds_read_b64_tr_b16 {v(vGF+4*m,2)}, {v(vBg)} offset:{m*1024}")
        a(f"ds_read_b64_tr_b16 {v(vGF+4*m+2,2)}, {v(vBg+1)} offset:{m*1024}")
        a(f"ds_read_b64_tr_b16 {v(vUF+4*m,2)}, {v(vBg)} offset:{4096+m*1024}")
        a(f"ds_read_b64_tr_b16 {v(vUF+4*m+2,2)}, {v(vBg+1)} offset:{4096+m*1024}")
    a("s_waitcnt lgkmcnt(0)")
    vCSg, vCSu = 96, 100
    for m in range(3):
        a(f"v_mfma_f32_16x16x32_bf16 {v(vCSg,4)}, {v(vONE,4)}, {v(vGF+4*m,4)}, {'0' if m == 0 else v(vCSg,4)}")
        a(f"v_mfma_f32_16x16x32_bf16 {v(vCSu,4)}, {v(vONE,4)}, {v(vUF+4*m,4)}, {'0' if m == 0 else v(vCSu,4)}")
    a(f"s_cmp_ge_u32 {s(sW)}, 2")
    a("s_cbranch_scc1 L_f_cs3")
    a(f"v_mfma_f32_16x16x32_bf16 {v(vCSg,4)}, {v(vONE,4)}, {v(vGF+12,4)}, {v(vCSg,4)}")
    a(f"v_mfma_f32_16x16x32_bf16 {v(vCSu,4)}, {v(vONE,4)}, {v(vUF+12,4)}, {v(vCSu,4)}")
    a.label("L_f_cs3")
    a("s_nop 7")
    a(f"v_and_b32 {v(vT+1)}, 1, {v(vG)}")
    a(f"v_cmp_eq_u32 vcc, 0, {v(vT+1)}")
    a(f"v_cndmask_b32 {v(vT)}, {v(vCSu)}, {v(vCSg)}, vcc")
    a(f"s_lshl_b32 {s(sT0)}, {s(sW)}, 2")
    a(f"s_add_u32 {s(sT1)}, {s(sT0)}, {CS_LDS}")
    a(f"v_and_b32 {v(vT+1)}, 31, {v(vL)}")
    a(f"v_lshlrev_b32 {v(vT+1)}, 4, {v(vT+1)}")
    a(f"v_add_u32 {v(vT+1)}, {s(sT1)}, {v(vT+1)}")
    a(f"ds_write_b32 {v(vT+1)}, {v(vT)}")
    a("s_waitcnt lgkmcnt(0)")
    a("s_barrier")
    vU4 = 48
    a(f"v_and_b32 {v(vT)}, 3, {v(vN)}")
    a(f"v_lshl_add_u32 {v(vU4)}, {v(vG)}, 2, {v(vT)}")
    a(f"v_lshlrev_b32 {v(vU4)}, 4, {v(vU4)}")
    a(f"v_add_u32 {v(vT)}, {CS_LDS}, {v(vU4)}")
    a(f"ds_read_b128 {v(vCSg,4)}, {v(vT)}")
    a(f"ds_read_b128 {v(vCSu,4)}, {v(vT)} offset:256")
    vDF = 104
    for jj in range(7):
        a(f"ds_read_b64_tr_b16 {v(vDF+2*jj,2)}, {v(vBd+jj)}")
    a("s_waitcnt lgkmcnt(0)")
    a(f"v_add_f32 {v(vCSg)}, {v(vCSg)}, {v(vCSg+1)}")
    a(f"v_add_f32 {v(vCSg+2)}, {v(vCSg+2)}, {v(vCSg+3)}")
    a(f"v_add_f32 {v(vCSg)}, {v(vCSg)}, {v(vCSg+2)}")
    a(f"v_add_f32 {v(vCSu)}, {v(vCSu)}, {v(vCSu+1)}")
    a(f"v_add_f32 {v(vCSu+2)}, {v(vCSu+2)}, {v(vCSu+3)}")
    a(f"v_add_f32 {v(vCSu)}, {v(vCSu)}, {v(vCSu+2)}")
    vRw, vRr = 49, 50
    a(f"s_add_u32 {s(sT1)}, {s(sT0)}, {RED_LDS}")
    a(f"v_lshlrev_b32 {v(vRw)}, 4, {v(vL)}")
    a(f"v_add_u32 {v(vRw)}, {s(sT1)}, {v(vRw)}")
    a(f"v_add_u32 {v(vRr)}, {RED_LDS}, {v(vU4)}")
    a(f"v_mov_b32 {v(vRr+1)}, {RED_LDS}")
    vYF = 120
    a.label("L_f_retry")
    for m in range(3):
        a(f"buffer_load_dwordx4 {v(vYF+4*m,4)}, {v(vYa)}, {s(S_WS,4)}, 0 offen offset:{256*m} sc1")
    a(f"buffer_load_dwordx4 {v(vYF+12,4)}, {v(vYa+1)}, {s(S_WS,4)}, 0 offen sc1")
    a("s_waitcnt vmcnt(0)")
    a(f"v_max3_u32 {v(vT)}, {v(vYF)}, {v(vYF+1)}, {v(vYF+2)}")
    for i in range(3, 15, 2):
        a(f"v_max3_u32 {v(vT)}, {v(vT)}, {v(vYF+i)}, {v(vYF+i+1)}")
    a(f"v_max_u32 {v(vT)}, {v(vT)}, {v(vYF+15)}")
    a(f"v_cmp_eq_u32 vcc, -1, {v(vT)}")
    a("s_and_b64 vcc, exec, vcc")
    spin_check("L_f_retry", "L_f_ok")
    stamp()
    vDg, vDu, vGr, vS1 = 136, 140, 144, 148
    a(f"v_mov_b32 {v(vS1)}, 0")
    def f_step(m):
        c0 = (lambda r: "0" if m == 0 else v(r, 4))
        a(f"v_mfma_f32_16x16x32_bf16 {v(vDg,4)}, {v(vYF+4*m,4)}, {v(vGF+4*m,4)}, {c0(vDg)}")
        a(f"v_mfma_f32_16x16x32_bf16 {v(vDu,4)}, {v(vYF+4*m,4)}, {v(vUF+4*m,4)}, {c0(vDu)}")
        a(f"v_mfma_f32_16x16x32_bf16 {v(vGr,4)}, {v(vYF+4*m,4)}, {v(vYF+4*m,4)}, {c0(vGr)}")
        for i in range(4):
            a(f"v_dot2_f32_bf16 {v(vS1)}, {v(vYF+4*m+i)}, {v(vONE)}, {v(vS1)}")
    for m in range(3):
        f_step(m)
    a(f"s_cmp_ge_u32 {s(sW)}, 2")
    a("s_cbranch_scc1 L_f_m3")
    f_step(3)
    a.label("L_f_m3")
    a("s_nop 7")
    for d in (vDg, vDu, vGr):
        a(f"v_add_f32 {v(d)}, {v(d)}, {v(d+1)}")
        a(f"v_add_f32 {v(d+2)}, {v(d+2)}, {v(d+3)}")
        a(f"v_add_f32 {v(d)}, {v(d)}, {v(d+2)}")
    a(f"v_permlane16_swap_b32 {v(vDg)}, {v(vDu)}")
    a(f"v_permlane16_swap_b32 {v(vGr)}, {v(vS1)}")
    a(f"v_add_f32 {v(vDg)}, {v(vDg)}, {v(vDu)}")
    a(f"v_add_f32 {v(vGr)}, {v(vGr)}, {v(vS1)}")
    a(f"v_permlane32_swap_b32 {v(vDg)}, {v(vGr)}")
    a(f"v_add_f32 {v(vDg)}, {v(vDg)}, {v(vGr)}")
    a(f"v_mov_b32 {v(vT)}, {v(vDg)}")
    row_allreduce("v_add_f32", vT)
    a(f"v_cmp_gt_u32 vcc, 2, {v(vG)}")
    a(f"v_cndmask_b32 {v(vT)}, {v(vT)}, {v(vDg)}, vcc")
    a(f"ds_write_b32 {v(vRw)}, {v(vT)}")
    a("s_waitcnt lgkmcnt(0)")
    a("s_barrier")
    vq = 152
    a(f"ds_read_b128 {v(vq,4)}, {v(vRr)}")
    a(f"ds_read_b128 {v(vq+4,4)}, {v(vRr)} offset:256")
    a(f"ds_read_b128 {v(vq+8,4)}, {v(vRr+1)} offset:512")
    a(f"ds_read_b128 {v(vq+12,4)}, {v(vRr+1)} offset:768")
    a("s_waitcnt lgkmcnt(0)")
    for k in range(4):
        d = vq + 4*k
        a(f"v_add_f32 {v(d)}, {v(d)}, {v(d+1)}")
        a(f"v_add_f32 {v(d+2)}, {v(d+2)}, {v(d+3)}")
        a(f"v_add_f32 {v(d)}, {v(d)}, {v(d+2)}")
    vGs, vUs, vS2f, vS1f = vq, vq+4, vq+8, vq+12
    a(f"v_mul_f32 {v(vS1f)}, {f32(1.0/448)}, {v(vS1f)}")
    a(f"v_mul_f32 {v(vS2f)}, {f32(1.0/448)}, {v(vS2f)}")
    a(f"v_fma_f32 {v(vS2f)}, -{v(vS1f)}, {v(vS1f)}, {v(vS2f)}")
    a(f"v_max_f32 {v(vS2f)}, 0, {v(vS2f)}")
    round_bf16(vS2f, vS2f)
    a(f"v_add_f32 {v(vS2f)}, {f32(1e-5)}, {v(vS2f)}")
    round_bf16(vS2f, vS2f)
    a(f"v_sqrt_f32 {v(vS2f)}, {v(vS2f)}")
    round_bf16(vS2f, vS2f)
    a(f"v_rcp_f32 {v(vS2f)}, {v(vS2f)}")
    round_bf16(vS1f, vS1f)
    a(f"v_fma_f32 {v(vGs)}, -{v(vS1f)}, {v(vCSg)}, {v(vGs)}")
    a(f"v_fma_f32 {v(vUs)}, -{v(vS1f)}, {v(vCSu)}, {v(vUs)}")
    a(f"v_mul_f32 {v(vGs)}, {v(vGs)}, {v(vS2f)}")
    a(f"v_mul_f32 {v(vUs)}, {v(vUs)}, {v(vS2f)}")
    round_bf16(vGs, vGs)
    round_bf16(vUs, vUs)
    K0 = -2.0 * 0.7978845608028654 * LOG2E
    a(f"v_mul_f32 {v(vT)}, {v(vGs)}, {v(vGs)}")
    a(f"v_mul_f32 {v(vT)}, {f32(0.044715)}, {v(vT)}")
    a(f"v_add_f32 {v(vT)}, 1.0, {v(vT)}")
    a(f"v_mul_f32 {v(vT)}, {v(vT)}, {v(vGs)}")
    a(f"v_mul_f32 {v(vT)}, {f32(K0)}, {v(vT)}")
    a(f"v_exp_f32 {v(vT)}, {v(vT)}")
    a(f"v_add_f32 {v(vT)}, 1.0, {v(vT)}")
    a(f"v_rcp_f32 {v(vT)}, {v(vT)}")
    a(f"v_mul_f32 {v(vT)}, {v(vT)}, {v(vGs)}")
    round_bf16(vT, vT)
    a(f"v_mul_f32 {v(vT)}, {v(vT)}, {v(vUs)}")
    vHA = 168
    for e in range(4):
        a(f"v_mov_b32_dpp {v(vHA+2+e)}, {v(vT)} quad_perm:[{e},{e},{e},{e}] row_mask:0xf bank_mask:0xf")
    a(f"v_cvt_pk_bf16_f32 {v(vHA)}, {v(vHA+2)}, {v(vHA+3)}")
    a(f"v_cvt_pk_bf16_f32 {v(vHA+1)}, {v(vHA+4)}, {v(vHA+5)}")
    vZo = 176
    for jj in range(7):
        a(f"v_mfma_f32_16x16x16_bf16 {v(vZo+4*jj,4)}, {v(vHA,2)}, {v(vDF+2*jj,2)}, 0")
    a(f"v_cmp_eq_u32 {s(sM1,2)}, 1, {v(vG)}")
    a(f"v_cmp_eq_u32 {s(sM2,2)}, 2, {v(vG)}")
    a(f"v_cmp_eq_u32 {s(sM3,2)}, 3, {v(vG)}")
    a(f"s_mul_i32 {s(sT0)}, {s(sF)}, 1792")
    a(f"s_mul_i32 {s(sT1)}, {s(sW)}, 448")
    a(f"s_add_u32 {s(sT0)}, {s(sT0)}, {s(sT1)}")
    a(f"s_add_u32 {s(sT0)}, {s(sT0)}, {WS_Z}")
    a(f"v_lshlrev_b32 {v(vT+1)}, 2, {v(vL)}")
    a(f"v_add_u32 {v(vT+1)}, {s(sT0)}, {v(vT+1)}")
    a(f"v_add_u32 {v(vT+2)}, 256, {v(vT+1)}")
    a(f"v_mov_b32 {v(vT+3)}, {OOB}")
    a(f"v_cndmask_b32 {v(vT+2)}, {v(vT+2)}, {v(vT+3)}, {s(sM3,2)}")
    a(f"v_cndmask_b32 {v(vT+4)}, {v(vZo)}, {v(vZo+4)}, {s(sM1,2)}")
    a(f"v_cndmask_b32 {v(vT+4)}, {v(vT+4)}, {v(vZo+8)}, {s(sM2,2)}")
    a(f"v_cndmask_b32 {v(vT+4)}, {v(vT+4)}, {v(vZo+12)}, {s(sM3,2)}")
    a(f"v_cndmask_b32 {v(vT+5)}, {v(vZo+16)}, {v(vZo+20)}, {s(sM1,2)}")
    a(f"v_cndmask_b32 {v(vT+5)}, {v(vT+5)}, {v(vZo+24)}, {s(sM2,2)}")
    a(f"v_min_u32 {v(vT+4)}, -2, {v(vT+4)}")
    a(f"v_min_u32 {v(vT+5)}, -2, {v(vT+5)}")
    a(f"buffer_store_dword {v(vT+4)}, {v(vT+1)}, {s(S_WS,4)}, 0 offen sc1")
    a(f"buffer_store_dword {v(vT+5)}, {v(vT+2)}, {s(S_WS,4)}, 0 offen sc1")
    stamp()
    a("s_branch L_end")

    a.label("L_role_o")
    a.c("O role")
    nstamp[0] = 8
    rolebase[0] = 4
    a(f"s_cmp_ge_u32 {s(sO)}, 28")
    a("s_cbranch_scc1 L_end")
    a(f"s_cmp_lg_u32 {s(sW)}, 0")
    a("s_cbranch_scc1 L_end")
    srd(S_OUT, pOUT, 896)
    vq4, vhd = 32, 33
    a(f"v_and_b32 {v(vq4)}, 3, {v(vL)}")
    a(f"v_lshrrev_b32 {v(vhd)}, 2, {v(vL)}")
    a(f"v_mul_u32_u24 {v(vT)}, 896, {v(vhd)}")
    a(f"v_lshl_add_u32 {v(vT)}, {v(vq4)}, 3, {v(vT)}")
    a(f"s_lshl_b32 {s(sT0)}, {s(sO)}, 5")
    a(f"s_add_u32 {s(sT0)}, {s(sT0)}, {WS_Y}")
    a(f"v_add_u32 {v(vT)}, {s(sT0)}, {v(vT)}")
    a(f"v_mul_u32_u24 {v(vT+1)}, 1792, {v(vhd)}")
    a(f"v_lshl_add_u32 {v(vT+1)}, {v(vq4)}, 4, {v(vT+1)}")
    a(f"s_lshl_b32 {s(sT0)}, {s(sO)}, 6")
    a(f"s_add_u32 {s(sT0)}, {s(sT0)}, {WS_Z}")
    a(f"v_add_u32 {v(vT+1)}, {s(sT0)}, {v(vT+1)}")
    vYo = 36
    a.label("L_oy_retry")
    a(f"buffer_load_dwordx2 {v(vYo,2)}, {v(vT)}, {s(S_WS,4)}, 0 offen sc1")
    a("s_waitcnt vmcnt(0)")
    a(f"v_max_u32 {v(vT+2)}, {v(vYo)}, {v(vYo+1)}")
    a(f"v_cmp_eq_u32 vcc, -1, {v(vT+2)}")
    a("s_and_b64 vcc, exec, vcc")
    spin_check("L_oy_retry", "L_oy_ok")
    vH = 40
    a(f"v_lshlrev_b32 {v(vH)}, 16, {v(vYo)}")
    a(f"v_and_b32 {v(vH+1)}, 0xffff0000, {v(vYo)}")
    a(f"v_lshlrev_b32 {v(vH+2)}, 16, {v(vYo+1)}")
    a(f"v_and_b32 {v(vH+3)}, 0xffff0000, {v(vYo+1)}")
    def quadcol_reduce(base):
        for r in (4, 8):
            for i in range(4):
                a(f"v_add_f32_dpp {v(base+i)}, {v(base+i)}, {v(base+i)} row_ror:{r} row_mask:0xf bank_mask:0xf")
        for sw in ("v_permlane16_swap_b32", "v_permlane32_swap_b32"):
            for i in range(4):
                a(f"v_mov_b32 {v(vT+4+i)}, {v(base+i)}")
            for i in range(4):
                a(f"{sw} {v(base+i)}, {v(vT+4+i)}")
            for i in range(4):
                a(f"v_add_f32 {v(base+i)}, {v(base+i)}, {v(vT+4+i)}")
    quadcol_reduce(vH)
    for i in range(4):
        round_bf16(vH+i, vH+i)
    vZ = 48
    a.label("L_oz_retry")
    for i in range(7):
        a(f"s_mov_b32 {s(sT2)}, {16*i*1792}")
        a(f"buffer_load_dwordx4 {v(vZ+4*i,4)}, {v(vT+1)}, {s(S_WS,4)}, {s(sT2)} offen sc1")
    a("s_waitcnt vmcnt(0)")
    a(f"v_max3_u32 {v(vT+2)}, {v(vZ)}, {v(vZ+1)}, {v(vZ+2)}")
    for i in range(3, 27, 2):
        a(f"v_max3_u32 {v(vT+2)}, {v(vT+2)}, {v(vZ+i)}, {v(vZ+i+1)}")
    a(f"v_max_u32 {v(vT+2)}, {v(vT+2)}, {v(vZ+27)}")
    a(f"v_cmp_eq_u32 vcc, -1, {v(vT+2)}")
    a("s_and_b64 vcc, exec, vcc")
    spin_check("L_oz_retry", "L_oz_ok")
    stamp()
    for i in range(1, 7):
        for k in range(4):
            a(f"v_add_f32 {v(vZ+k)}, {v(vZ+k)}, {v(vZ+4*i+k)}")
    quadcol_reduce(vZ)
    for i in range(4):
        round_bf16(vZ+i, vZ+i)
    for i in range(4):
        a(f"v_add_f32 {v(vZ+i)}, {v(vZ+i)}, {v(vH+i)}")
    a(f"v_cvt_pk_bf16_f32 {v(vZ)}, {v(vZ)}, {v(vZ+1)}")
    a(f"v_cvt_pk_bf16_f32 {v(vZ+1)}, {v(vZ+2)}, {v(vZ+3)}")
    a(f"s_lshl_b32 {s(sT0)}, {s(sO)}, 5")
    a(f"v_lshlrev_b32 {v(vT)}, 3, {v(vL)}")
    a(f"v_add_u32 {v(vT)}, {s(sT0)}, {v(vT)}")
    a(f"v_mov_b32 {v(vT+1)}, {OOB}")
    a(f"v_cmp_gt_u32 vcc, 4, {v(vL)}")
    a(f"v_cndmask_b32 {v(vT)}, {v(vT+1)}, {v(vT)}, vcc")
    a(f"buffer_store_dwordx2 {v(vZ,2)}, {v(vT)}, {s(S_OUT,4)}, 0 offen")
    a(f"s_cmp_lg_u32 {s(sO)}, 0")
    a("s_cbranch_scc1 L_o_noepoch")
    a(f"v_mov_b32 {v(vT+2)}, {s(sTAG)}")
    a(f"v_mov_b32 {v(vT+3)}, {WS_EPOCH}")
    a(f"v_cmp_eq_u32 vcc, 0, {v(vL)}")
    a(f"v_cndmask_b32 {v(vT+3)}, {v(vT+1)}, {v(vT+3)}, vcc")
    a(f"buffer_store_dword {v(vT+2)}, {v(vT+3)}, {s(S_WS,4)}, 0 offen")
    a.label("L_o_noepoch")
    stamp()
    a.label("L_end")
    a("s_endpgm")

    body = a.render()
    head = f"""; fused pre-LN attention (sliding window decode) + GEGLU FFN, one launch, 256 workgroups
; @launch grid=(256,1,1) block=(256,1,1) lds={LDS_SIZE}
.amdgcn_target "amdgcn-amd-amdhsa--gfx950"
.text
.globl {NAME}_kernel
.p2align 8
.type {NAME}_kernel,@function
"""
    tail = f"""
.section .rodata,"a"
.p2align 6
.amdhsa_kernel {NAME}_kernel
  .amdhsa_next_free_vgpr 256
  .amdhsa_next_free_sgpr 100
  .amdhsa_accum_offset 256
  .amdhsa_group_segment_fixed_size 0
  .amdhsa_kernarg_size 96
  .amdhsa_user_sgpr_count 2
  .amdhsa_user_sgpr_kernarg_segment_ptr 1
  .amdhsa_system_sgpr_workgroup_id_x 1
  .amdhsa_float_denorm_mode_32 3
.end_amdhsa_kernel
"""
    return head + body + tail

if __name__ == "__main__":
    cfg = Cfg()
    out = sys.argv[1] if len(sys.argv) > 1 else "cdna_kernels/%s.s" % NAME
    for kv in sys.argv[2:]:
        k, val = kv.split("=")
        cur = getattr(cfg, k)
        setattr(cfg, k, type(cur)(int(val)) if isinstance(cur, (bool, int)) else val)
    open(out, "w").write(gen(cfg))
    print("wrote", out)
```

```python
import sys
from asmlib import Asm, v, s

NAME = "sequential_preLN__sliding_block_cached__glu_gated_geglu__decode"

WS_EPOCH = 0
WS_TOK   = 0x1000
WS_QP    = 0x2000
WS_O     = 0x40000
WS_ML    = 0x80000
WS_Y     = 0x84000
WS_Z     = 0x88000
WS_STAMP = 0xC0000
WS_SIZE  = 0x100000
K_LDS  = 0
V_LDS  = 65536
WQ_LDS = 131072
LN_LDS = 147456
Q_LDS  = 151552
PX_LDS = 152704
MX_LDS = 156800
LS_LDS = 157824
RED_LDS = 158848
CS_LDS = RED_LDS + 1024
LDS_SIZE = 161792

LOG2E = 1.4426950408889634

def f32(x):
    import struct
    return "0x%08x" % struct.unpack("<I", struct.pack("<f", x))[0]

class Cfg:
    stamps = False
    dstamps = False
    dwg = 224
    tail_pos = 1
    spin_max = 200000
    pol_kv = "nt"
    pol_w = "nt"

def gen(cfg):
    a = Asm()
    sB, sW, sJ, sSP, sTAG, sCNT = 2, 3, 4, 5, 6, 7
    S_WS, S_K, S_V, S_WQ, S_X, S_WA, S_WB, S_WC, S_OUT = 8, 12, 16, 20, 24, 28, 32, 36, 40
    sP = 44
    pX, pK, pV, pWQ, pWO, pBX, pG, pU, pD, pOUT, pDBG, pWS = [sP + 2 * i for i in range(12)]
    sT0, sT1, sT2, sT3, sT4, sT5 = 68, 69, 70, 71, 72, 73
    sROLE, sH, sC7, sF, sO = 74, 75, 76, 77, 78
    sM1, sM2, sM3 = 80, 82, 84
    sST = 86
    sKOFF, sVOFF = 90, 91

    vTID, vL, vN, vG = 0, 1, 2, 3
    vT = 4
    nstamp = [0]
    nlab = [0]
    rolebase = [0]

    def stamp():
        if not (cfg.stamps or cfg.dstamps): return
        i = nstamp[0]; nstamp[0] += 1
        nlab[0] += 1
        lab = f"L_st{nlab[0]}"
        a(f"s_cmp_lg_u32 {s(sW)}, 0")
        a(f"s_cbranch_scc1 {lab}")
        a(f"s_memrealtime {s(sST,2)}")
        a("s_waitcnt lgkmcnt(0)")
        a(f"v_writelane_b32 v254, {s(sST)}, {i+1}")
        a.label(lab)
    def stamp_flush():
        if not (cfg.stamps or cfg.dstamps): return
        nlab[0] += 1
        lab = f"L_st{nlab[0]}"
        a(f"s_cmp_lg_u32 {s(sW)}, 0")
        a(f"s_cbranch_scc1 {lab}")
        a(f"v_writelane_b32 v254, {s(sST+2)}, 0")
        a(f"v_lshlrev_b32 v252, 2, {v(vL)}")
        a(f"v_mov_b32 v253, 0x7ffffff0")
        a(f"v_cmp_gt_u32 vcc, 16, {v(vL)}")
        a(f"v_cndmask_b32 v252, v253, v252, vcc")
        if cfg.stamps:
            a(f"s_lshl_b32 {s(sST)}, {s(sB)}, 6")
            a(f"s_add_u32 {s(sST)}, {s(sST)}, {WS_STAMP}")
            a(f"buffer_store_dword v254, v252, {s(S_WS,4)}, {s(sST)} offen")
        else:
            a(f"s_cmp_lg_u32 {s(sB)}, {cfg.dwg}")
            a(f"s_cbranch_scc1 {lab}")
            srd(92, pDBG, 256)
            a(f"buffer_store_dword v254, v252, s[92:95], 0 offen")
        a.label(lab)

    def srd(dst, ptr, size):
        a(f"s_mov_b32 {s(dst)}, {s(ptr)}")
        a(f"s_and_b32 {s(dst+1)}, {s(ptr+1)}, 0xffff")
        a(f"s_mov_b32 {s(dst+2)}, {size}")
        a(f"s_mov_b32 {s(dst+3)}, 0x20000")

    def row_allreduce(op, x):
        for r in (8, 4, 2, 1):
            a(f"{op}_dpp {v(x)}, {v(x)}, {v(x)} row_ror:{r} row_mask:0xf bank_mask:0xf")
    def g_allreduce(op, x, t):
        a(f"v_mov_b32 {v(t)}, {v(x)}")
        a(f"v_permlane16_swap_b32 {v(x)}, {v(t)}")
        a(f"{op} {v(x)}, {v(x)}, {v(t)}")
        a(f"v_mov_b32 {v(t)}, {v(x)}")
        a(f"v_permlane32_swap_b32 {v(x)}, {v(t)}")
        a(f"{op} {v(x)}, {v(x)}, {v(t)}")
    def wave_allreduce(op, x, t):
        row_allreduce(op, x); g_allreduce(op, x, t)
    def round_bf16(dst, src):
        a(f"v_cvt_pk_bf16_f32 {v(dst)}, {v(src)}, {v(src)}")
        a(f"v_lshlrev_b32 {v(dst)}, 16, {v(dst)}")

    def spin_check(lab_retry, lab_ok):
        a(f"s_cbranch_vccz {lab_ok}")
        a(f"s_sub_u32 {s(sCNT)}, {s(sCNT)}, 1")
        a(f"s_cbranch_scc0 {lab_retry}")
        a.label(lab_ok)

    a.label(f"{NAME}_kernel")
    a(f"s_cmp_ge_u32 {s(sB)}, 256")
    a("s_cbranch_scc1 L_end")
    if cfg.dstamps or cfg.stamps:
        a(f"s_memrealtime {s(sST+2,2)}")
        a("v_mov_b32 v254, 0")
    a(f"s_load_dwordx16 {s(sP,16)}, s[0:1], 0")
    a(f"s_load_dwordx8 {s(sP+16,8)}, s[0:1], 64")
    a(f"v_lshrrev_b32 {v(vT)}, 6, {v(vTID)}")
    a(f"v_and_b32 {v(vL)}, 63, {v(vTID)}")
    a(f"v_readfirstlane_b32 {s(sW)}, {v(vT)}")
    a(f"v_and_b32 {v(vN)}, 15, {v(vL)}")
    a(f"v_lshrrev_b32 {v(vG)}, 4, {v(vL)}")
    a(f"s_and_b32 {s(sJ)}, {s(sB)}, 7")
    a(f"s_lshr_b32 {s(sSP)}, {s(sB)}, 3")
    a(f"s_mov_b32 {s(sCNT)}, {cfg.spin_max}")
    a(f"s_mov_b32 {s(sROLE)}, 0")
    a(f"s_cmp_ge_u32 {s(sSP)}, 14")
    a(f"s_cselect_b32 {s(sROLE)}, 1, 0")
    a(f"s_cmp_ge_u32 {s(sSP)}, 28")
    a(f"s_cselect_b32 {s(sROLE)}, 2, {s(sROLE)}")
    a(f"s_cmp_ge_u32 {s(sSP)}, 7")
    a(f"s_cselect_b32 {s(sT0)}, 1, 0")
    a(f"s_lshl_b32 {s(sH)}, {s(sJ)}, 1")
    a(f"s_add_u32 {s(sH)}, {s(sH)}, {s(sT0)}")
    a(f"s_mul_i32 {s(sT0)}, {s(sT0)}, 7")
    a(f"s_sub_u32 {s(sC7)}, {s(sSP)}, {s(sT0)}")
    a(f"s_mul_i32 {s(sF)}, {s(sJ)}, 14")
    a(f"s_add_u32 {s(sF)}, {s(sF)}, {s(sSP)}")
    a(f"s_sub_u32 {s(sF)}, {s(sF)}, 14")
    a(f"s_sub_u32 {s(sO)}, {s(sSP)}, 28")
    a(f"s_lshl_b32 {s(sO)}, {s(sO)}, 3")
    a(f"s_add_u32 {s(sO)}, {s(sO)}, {s(sJ)}")
    a(f"s_lshl_b32 {s(sT0)}, {s(sJ)}, 23")
    a(f"s_lshl_b32 {s(sT1)}, {s(sSP)}, 16")
    a(f"s_add_u32 {s(sVOFF)}, {s(sT0)}, {s(sT1)}")
    a(f"s_add_u32 {s(sVOFF)}, {s(sVOFF)}, {12288*512}")
    a(f"s_lshl_b32 {s(sT0)}, {s(sW)}, 14")
    a(f"s_add_u32 {s(sKOFF)}, {s(sVOFF)}, {s(sT0)}")

    vXo, vClr, vWQo, vK0, vVo = 16, 17, 18, 20, 19
    a(f"v_lshlrev_b32 {v(vXo)}, 4, {v(vL)}")
    a(f"v_lshrrev_b32 {v(vT)}, 3, {v(vL)}")
    a(f"v_and_b32 {v(vT+1)}, 7, {v(vL)}")
    a(f"v_bfe_u32 {v(vT+2)}, {v(vT)}, 1, 1")
    a(f"s_and_b32 {s(sT0)}, {s(sW)}, 1")
    a(f"s_lshl_b32 {s(sT0)}, {s(sT0)}, 2")
    a(f"v_lshlrev_b32 {v(vT+2)}, 1, {v(vT+2)}")
    a(f"v_or_b32 {v(vT+2)}, {s(sT0)}, {v(vT+2)}")
    a(f"v_xor_b32 {v(vT+2)}, {v(vT+1)}, {v(vT+2)}")
    a(f"v_lshlrev_b32 {v(vT+2)}, 4, {v(vT+2)}")
    a(f"v_lshl_add_u32 {v(vWQo)}, {v(vT)}, 13, {v(vT+2)}")
    a(f"v_bfe_u32 {v(vT+2)}, {v(vT)}, 1, 2")
    a(f"v_lshlrev_b32 {v(vT+2)}, 1, {v(vT+2)}")
    a(f"v_xor_b32 {v(vT+2)}, {v(vT+1)}, {v(vT+2)}")
    a(f"v_lshlrev_b32 {v(vT+2)}, 4, {v(vT+2)}")
    a(f"v_lshl_add_u32 {v(vVo)}, {v(vT)}, 9, {v(vT+2)}")
    a(f"s_lshl_b32 {s(sT0)}, {s(sW)}, 7")
    a(f"v_add_u32 {v(vVo)}, {s(sT0)}, {v(vVo)}")
    a(f"v_lshrrev_b32 {v(vT)}, 5, {v(vL)}")
    a(f"v_and_b32 {v(vT+1)}, 31, {v(vL)}")
    a(f"v_xor_b32 {v(vT+1)}, {v(vT+1)}, {v(vT)}")
    a(f"v_lshlrev_b32 {v(vT+1)}, 4, {v(vT+1)}")
    a(f"v_lshl_add_u32 {v(vK0)}, {v(vT)}, 9, {v(vT+1)}")
    for jj in range(1, 8):
        a(f"v_xor_b32 {v(vK0+jj)}, {(2*jj) << 4}, {v(vK0)}")
    OOB = 0x7ffffff0
    a(f"v_mov_b32 {v(vClr)}, {OOB}")
    a(f"s_cmp_eq_u32 {s(sW)}, 0")
    a("s_cbranch_scc1 L_clr_w0")
    a(f"s_cmp_eq_u32 {s(sW)}, 3")
    a("s_cbranch_scc1 L_clr_w3")
    a(f"s_cmp_lg_u32 {s(sROLE)}, 1")
    a("s_cbranch_scc1 L_clr_done")
    a(f"s_mul_i32 {s(sT0)}, {s(sF)}, 1792")
    a(f"s_sub_u32 {s(sT1)}, {s(sW)}, 1")
    a(f"s_mul_i32 {s(sT1)}, {s(sT1)}, 896")
    a(f"s_add_u32 {s(sT0)}, {s(sT0)}, {s(sT1)}")
    a(f"s_add_u32 {s(sT0)}, {s(sT0)}, {WS_Z}")
    a(f"v_add_u32 {v(vT)}, {s(sT0)}, {v(vXo)}")
    a(f"v_cmp_gt_u32 vcc, 56, {v(vL)}")
    a(f"v_cndmask_b32 {v(vClr)}, {v(vClr)}, {v(vT)}, vcc")
    a("s_branch L_clr_done")
    a.label("L_clr_w0")
    a(f"v_lshrrev_b32 {v(vT)}, 5, {v(vL)}")
    a(f"v_and_b32 {v(vT+1)}, 31, {v(vL)}")
    a(f"v_lshlrev_b32 {v(vT+1)}, 4, {v(vT+1)}")
    a(f"v_lshl_add_u32 {v(vClr)}, {v(vT)}, 14, {v(vT+1)}")
    a(f"s_lshl_b32 {s(sT0)}, {s(sJ)}, 15")
    a(f"s_lshl_b32 {s(sT1)}, {s(sSP)}, 9")
    a(f"s_add_u32 {s(sT0)}, {s(sT0)}, {s(sT1)}")
    a(f"s_add_u32 {s(sT0)}, {s(sT0)}, {WS_O}")
    a(f"v_add_u32 {v(vClr)}, {s(sT0)}, {v(vClr)}")
    a("s_branch L_clr_done")
    a.label("L_clr_w3")
    a(f"s_lshl_b32 {s(sT0)}, {s(sJ)}, 10")
    a(f"s_lshl_b32 {s(sT1)}, {s(sSP)}, 4")
    a(f"s_add_u32 {s(sT0)}, {s(sT0)}, {s(sT1)}")
    a(f"s_add_u32 {s(sT0)}, {s(sT0)}, {WS_ML}")
    a(f"v_lshlrev_b32 {v(vT)}, 9, {v(vL)}")
    a(f"v_add_u32 {v(vT)}, {s(sT0)}, {v(vT)}")
    a(f"v_cmp_gt_u32 vcc, 2, {v(vL)}")
    a(f"v_cndmask_b32 {v(vClr)}, {v(vClr)}, {v(vT)}, vcc")
    a(f"s_cmp_lg_u32 {s(sROLE)}, 0")
    a("s_cbranch_scc1 L_clr_done")
    a(f"s_mul_i32 {s(sT0)}, {s(sH)}, 896")
    a(f"s_lshl_b32 {s(sT1)}, {s(sC7)}, 7")
    a(f"s_add_u32 {s(sT0)}, {s(sT0)}, {s(sT1)}")
    a(f"s_add_u32 {s(sT0)}, {s(sT0)}, {WS_Y - 128}")
    a(f"v_add_u32 {v(vT)}, {s(sT0)}, {v(vXo)}")
    a(f"v_lshrrev_b32 {v(vT+1)}, 3, {v(vL)}")
    a(f"v_cmp_eq_u32 vcc, 1, {v(vT+1)}")
    a(f"v_cndmask_b32 {v(vClr)}, {v(vClr)}, {v(vT)}, vcc")
    a.label("L_clr_done")
    vONES = 28
    for i in range(4):
        a(f"v_mov_b32 {v(vONES+i)}, -1")

    a("s_waitcnt lgkmcnt(0)")
    a(f"s_load_dword {s(sTAG)}, {s(pWS,2)}, {WS_EPOCH}")
    srd(S_X, pX, 896)
    srd(S_WS, pWS, WS_SIZE)
    srd(S_WQ, pWQ, 448*4096*2)
    vX = 32
    a(f"buffer_load_dwordx4 {v(vX,4)}, {v(vXo)}, {s(S_X,4)}, 0 offen")
    a(f"buffer_store_dwordx4 {v(vONES,4)}, {v(vClr)}, {s(S_WS,4)}, 0 offen sc1")
    a(f"s_lshr_b32 {s(sT0)}, {s(sSP)}, 3")
    a(f"s_mul_i32 {s(sT0)}, {s(sT0)}, {112*8192}")
    a(f"s_and_b32 {s(sT1)}, {s(sSP)}, 7")
    a(f"s_lshl_b32 {s(sT2)}, {s(sJ)}, 3")
    a(f"s_add_u32 {s(sT1)}, {s(sT1)}, {s(sT2)}")
    a(f"s_lshl_b32 {s(sT1)}, {s(sT1)}, 7")
    a(f"s_add_u32 {s(sT0)}, {s(sT0)}, {s(sT1)}")
    a(f"s_lshl_b32 {s(sT1)}, {s(sW)}, 16")
    a(f"s_add_u32 {s(sT0)}, {s(sT0)}, {s(sT1)}")
    a(f"s_lshl_b32 {s(sT1)}, {s(sW)}, 10")
    a(f"s_add_u32 {s(sT1)}, {s(sT1)}, {WQ_LDS}")
    for m in range(4):
        if m == 3:
            a(f"s_cmp_ge_u32 {s(sW)}, 2")
            a(f"s_cselect_b32 {s(sT2)}, {4*8*8192}, 0")
            a(f"s_sub_u32 {s(sT0)}, {s(sT0)}, {s(sT2)}")
            a(f"s_cselect_b32 {s(sT2)}, 4096, 0") if False else None
            a(f"s_cmp_ge_u32 {s(sW)}, 2")
            a(f"s_cselect_b32 {s(sT2)}, 4096, 0")
            a(f"s_sub_u32 {s(sT1)}, {s(sT1)}, {s(sT2)}")
        a(f"s_mov_b32 m0, {s(sT1)}")
        a(f"s_add_u32 {s(sT1)}, {s(sT1)}, 4096")
        a(f"buffer_load_dwordx4 {v(vWQo)}, {s(S_WQ,4)}, {s(sT0)} offen {cfg.pol_w} lds")
        a(f"s_add_u32 {s(sT0)}, {s(sT0)}, {4*8*8192}")
    srd(S_K, pK, 8*16384*512)
    a(f"s_lshl_b32 {s(sT1)}, {s(sW)}, 14")
    a(f"s_add_u32 {s(sT1)}, {s(sT1)}, {K_LDS}") if K_LDS else None
    a(f"s_mov_b32 {s(sT0)}, {s(sKOFF)}")
    for jj in range(16):
        if jj % 4 == 0:
            a(f"s_mov_b32 m0, {s(sT1)}")
            a(f"s_add_u32 {s(sT1)}, {s(sT1)}, 4096")
        a(f"buffer_load_dwordx4 {v(vK0 + jj % 8)}, {s(S_K,4)}, {s(sT0)} offen offset:{(jj%4)*1024} {cfg.pol_kv} lds")
        if jj % 4 == 3:
            a(f"s_add_u32 {s(sT0)}, {s(sT0)}, 4096")
    srd(S_V, pV, 8*16384*512)
    stamp()

    a.c("LN1")
    vXf = 36
    a("s_waitcnt vmcnt(21)")
    for i in range(4):
        a(f"v_lshlrev_b32 {v(vXf+2*i)}, 16, {v(vX+i)}")
        a(f"v_and_b32 {v(vXf+2*i+1)}, 0xffff0000, {v(vX+i)}")
    vS, vS2, vTmp, vMu, vD = 44, 45, 46, 47, 48
    a(f"v_add_f32 {v(vS)}, {v(vXf)}, {v(vXf+1)}")
    for i in range(2, 8):
        a(f"v_add_f32 {v(vS)}, {v(vS)}, {v(vXf+i)}")
    wave_allreduce("v_add_f32", vS, vTmp)
    a(f"v_mul_f32 {v(vMu)}, {f32(1.0/448)}, {v(vS)}")
    for i in range(8):
        a(f"v_sub_f32 {v(vD+i)}, {v(vXf+i)}, {v(vMu)}")
    a(f"v_mul_f32 {v(vS2)}, {v(vD)}, {v(vD)}")
    for i in range(1, 8):
        a(f"v_fmac_f32 {v(vS2)}, {v(vD+i)}, {v(vD+i)}")
    a(f"v_cmp_gt_u32 vcc, 56, {v(vL)}")
    a(f"v_cndmask_b32 {v(vS2)}, 0, {v(vS2)}, vcc")
    wave_allreduce("v_add_f32", vS2, vTmp)
    a(f"v_mul_f32 {v(vS2)}, {f32(1.0/448)}, {v(vS2)}")
    round_bf16(vS2, vS2)
    a(f"v_add_f32 {v(vS2)}, {f32(1e-5)}, {v(vS2)}")
    round_bf16(vS2, vS2)
    a(f"v_sqrt_f32 {v(vS2)}, {v(vS2)}")
    round_bf16(vS2, vS2)
    a(f"v_rcp_f32 {v(vS2)}, {v(vS2)}")
    round_bf16(vMu, vMu)
    for i in range(8):
        a(f"v_sub_f32 {v(vD+i)}, {v(vXf+i)}, {v(vMu)}")
    for i in range(4):
        a(f"v_cvt_pk_bf16_f32 {v(vX+i)}, {v(vD+2*i)}, {v(vD+2*i+1)}")
    for i in range(4):
        a(f"v_lshlrev_b32 {v(vD+2*i)}, 16, {v(vX+i)}")
        a(f"v_and_b32 {v(vD+2*i+1)}, 0xffff0000, {v(vX+i)}")
    for i in range(8):
        a(f"v_mul_f32 {v(vD+i)}, {v(vD+i)}, {v(vS2)}")
    for i in range(4):
        a(f"v_cvt_pk_bf16_f32 {v(vX+i)}, {v(vD+2*i)}, {v(vD+2*i+1)}")
    a(f"s_lshl_b32 {s(sT0)}, {s(sW)}, 10")
    a(f"s_add_u32 {s(sT0)}, {s(sT0)}, {LN_LDS}")
    a(f"v_add_u32 {v(vT)}, {s(sT0)}, {v(vXo)}")
    a(f"ds_write_b128 {v(vT)}, {v(vX,4)}")
    vQA = 36
    a(f"s_lshr_b32 {s(sT1)}, {s(sSP)}, 3")
    a(f"s_mul_i32 {s(sT1)}, {s(sT1)}, 224")
    a(f"s_add_u32 {s(sT0)}, {s(sT0)}, {s(sT1)}")
    a(f"v_lshlrev_b32 {v(vT+1)}, 4, {v(vG)}")
    a(f"v_add_u32 {v(vT+1)}, {s(sT0)}, {v(vT+1)}")
    a(f"v_lshlrev_b32 {v(vT+2)}, 3, {v(vG)}")
    a(f"v_add_u32 {v(vT+2)}, {s(sT0)}, {v(vT+2)}")
    a("s_waitcnt lgkmcnt(0)")
    for t in range(3):
        a(f"ds_read_b128 {v(vQA+4*t,4)}, {v(vT+1)} offset:{64*t}")
    a(f"ds_read_b64 {v(vQA+12,2)}, {v(vT+2)} offset:192")
    vR, vC = 50, 51
    a(f"v_lshrrev_b32 {v(vR)}, 2, {v(vN)}")
    a(f"v_and_b32 {v(vC)}, 3, {v(vN)}")
    vBA, vBA2 = 52, 53
    a(f"v_bfe_u32 {v(vT)}, {v(vR)}, 1, 1")
    a(f"v_and_b32 {v(vT+1)}, 1, {v(vG)}")
    a(f"v_lshl_or_b32 {v(vT)}, {v(vT+1)}, 1, {v(vT)}")
    a(f"v_xor_b32 {v(vT)}, {s(sW)}, {v(vT)}")
    a(f"v_lshlrev_b32 {v(vT)}, 5, {v(vT)}")
    a(f"v_lshl_add_u32 {v(vT)}, {v(vC)}, 3, {v(vT)}")
    a(f"v_lshl_add_u32 {v(vT+1)}, {v(vG)}, 3, {v(vR)}")
    a(f"v_lshl_add_u32 {v(vBA)}, {v(vT+1)}, 7, {v(vT)}")
    a(f"v_add_u32 {v(vBA)}, {WQ_LDS}, {v(vBA)}")
    a(f"v_bfe_u32 {v(vT)}, {v(vR)}, 1, 1")
    a(f"v_lshrrev_b32 {v(vT+1)}, 1, {v(vG)}")
    a(f"v_lshl_or_b32 {v(vT)}, {v(vT+1)}, 1, {v(vT)}")
    a(f"v_xor_b32 {v(vT)}, {s(sW)}, {v(vT)}")
    a(f"v_lshlrev_b32 {v(vT)}, 5, {v(vT)}")
    a(f"v_lshl_add_u32 {v(vT)}, {v(vC)}, 3, {v(vT)}")
    a(f"v_lshl_add_u32 {v(vT+1)}, {v(vG)}, 2, {v(vR)}")
    a(f"v_lshl_add_u32 {v(vBA2)}, {v(vT+1)}, 7, {v(vT)}")
    a(f"v_add_u32 {v(vBA2)}, {WQ_LDS + 96*128}, {v(vBA2)}")
    a("s_waitcnt vmcnt(16)")
    a("s_barrier")
    stamp()
    vQB = 56
    for t in range(3):
        a(f"ds_read_b64_tr_b16 {v(vQB+4*t,2)}, {v(vBA)} offset:{4096*t}")
        a(f"ds_read_b64_tr_b16 {v(vQB+4*t+2,2)}, {v(vBA)} offset:{4096*t+512}")
    a(f"ds_read_b64_tr_b16 {v(vQB+12,2)}, {v(vBA2)}")
    vAcc = 72
    a("s_waitcnt lgkmcnt(0)")
    a(f"v_mfma_f32_16x16x32_bf16 {v(vAcc,4)}, {v(vQA,4)}, {v(vQB,4)}, 0")
    a(f"v_mfma_f32_16x16x32_bf16 {v(vAcc,4)}, {v(vQA+4,4)}, {v(vQB+4,4)}, {v(vAcc,4)}")
    a(f"v_mfma_f32_16x16x32_bf16 {v(vAcc,4)}, {v(vQA+8,4)}, {v(vQB+8,4)}, {v(vAcc,4)}")
    a(f"v_mfma_f32_16x16x16_bf16 {v(vAcc+4,4)}, {v(vQA+12,2)}, {v(vQB+12,2)}, 0")
    a(f"s_lshr_b32 {s(sT0)}, {s(sSP)}, 3")
    a(f"s_lshl_b32 {s(sT0)}, {s(sT0)}, 15")
    a(f"s_and_b32 {s(sT1)}, {s(sSP)}, 7")
    a(f"s_lshl_b32 {s(sT2)}, {s(sJ)}, 3")
    a(f"s_add_u32 {s(sT1)}, {s(sT1)}, {s(sT2)}")
    a(f"s_lshl_b32 {s(sT1)}, {s(sT1)}, 9")
    a(f"s_add_u32 {s(sT0)}, {s(sT0)}, {s(sT1)}")
    a(f"s_lshl_b32 {s(sT1)}, {s(sW)}, 7")
    a(f"s_add_u32 {s(sT0)}, {s(sT0)}, {s(sT1)}")
    a(f"s_add_u32 {s(sT0)}, {s(sT0)}, {WS_QP}")
    a(f"v_lshlrev_b32 {v(vT)}, 3, {v(vL)}")
    a(f"v_add_u32 {v(vT)}, {s(sT0)}, {v(vT)}")
    a(f"v_mov_b32 {v(vT+1)}, {OOB}")
    a(f"v_cmp_gt_u32 vcc, 16, {v(vL)}")
    a(f"v_cndmask_b32 {v(vT)}, {v(vT+1)}, {v(vT)}, vcc")
    a("s_waitcnt lgkmcnt(0)")
    a(f"s_mul_i32 {s(sTAG)}, {s(sTAG)}, 1664525")
    a(f"s_add_u32 {s(sTAG)}, {s(sTAG)}, 1013904223")
    a(f"v_add_f32 {v(vAcc)}, {v(vAcc)}, {v(vAcc+4)}")
    a(f"v_mov_b32 {v(vAcc+1)}, {s(sTAG)}")
    a(f"buffer_store_dwordx2 {v(vAcc,2)}, {v(vT)}, {s(S_WS,4)}, 0 offen sc1")
    a(f"s_lshl_b32 {s(sT0)}, {s(sB)}, 4")
    a(f"s_lshl_b32 {s(sT1)}, {s(sW)}, 2")
    a(f"s_add_u32 {s(sT0)}, {s(sT0)}, {s(sT1)}")
    a(f"s_add_u32 {s(sT0)}, {s(sT0)}, {WS_TOK}")
    a(f"v_mov_b32 {v(vT+2)}, {s(sT0)}")
    a(f"v_cmp_eq_u32 vcc, 0, {v(vL)}")
    a(f"v_cndmask_b32 {v(vT+2)}, {v(vT+1)}, {v(vT+2)}, vcc")
    a(f"buffer_store_dword {v(vAcc+1)}, {v(vT+2)}, {s(S_WS,4)}, 0 offen sc1")
    stamp()
    a(f"s_lshl_b32 {s(sT1)}, {s(sW)}, 14")
    a(f"s_add_u32 {s(sT1)}, {s(sT1)}, {V_LDS}")
    a(f"s_mov_b32 {s(sT0)}, {s(sVOFF)}")
    def v_dma(n):
        for i in range(n):
            a(f"s_mov_b32 m0, {s(sT1)}")
            a(f"s_add_u32 {s(sT1)}, {s(sT1)}, 1024")
            a(f"buffer_load_dwordx4 {v(vVo)}, {s(S_V,4)}, {s(sT0)} offen {cfg.pol_kv} lds")
            a(f"s_add_u32 {s(sT0)}, {s(sT0)}, 4096")
    v_dma(8)
    a(f"s_mov_b32 {s(sT4)}, {s(sT0)}")
    a(f"s_mov_b32 {s(sT5)}, {s(sT1)}")
    vGa, vGt = 36, 37
    a(f"s_lshl_b32 {s(sT2)}, {s(sJ)}, 12")
    a(f"s_add_u32 {s(sT2)}, {s(sT2)}, {WS_QP}")
    a(f"v_lshlrev_b32 {v(vGt)}, 4, {v(vTID)}")
    a(f"v_add_u32 {v(vGa)}, {s(sT2)}, {v(vGt)}")
    a(f"v_add_u32 {v(vGt)}, {WS_TOK}, {v(vGt)}")
    vGq = 40
    a("s_waitcnt vmcnt(10)")
    stamp()
    def h1_loads():
        for kq in range(4):
            a(f"s_mov_b32 {s(sT2)}, {kq*32768}")
            a(f"buffer_load_dwordx4 {v(vGq+4*kq,4)}, {v(vGa)}, {s(S_WS,4)}, {s(sT2)} offen sc1")
        a(f"buffer_load_dwordx4 {v(vGq+16,4)}, {v(vGt)}, {s(S_WS,4)}, 0 offen sc1")
    h1_loads()
    a(f"s_mov_b32 {s(sT0)}, {s(sT4)}")
    a(f"s_mov_b32 {s(sT1)}, {s(sT5)}")
    v_dma(8)
    a("s_waitcnt vmcnt(8)")
    a("s_branch L_h1_check")
    a.label("L_h1_retry")
    h1_loads()
    a("s_waitcnt vmcnt(0)")
    a.label("L_h1_check")
    vE = 60
    a(f"v_xor_b32 {v(vE)}, {s(sTAG)}, {v(vGq+1)}")
    for r in [3, 5, 7, 9, 11, 13, 15, 16, 17, 18, 19]:
        a(f"v_xor_b32 {v(vE+1)}, {s(sTAG)}, {v(vGq+r)}")
        a(f"v_or_b32 {v(vE)}, {v(vE)}, {v(vE+1)}")
    a(f"v_cmp_ne_u32 vcc, 0, {v(vE)}")
    a("s_and_b64 vcc, exec, vcc")
    spin_check("L_h1_retry", "L_h1_ok")
    stamp()
    a(f"v_add_f32 {v(vGq)}, {v(vGq)}, {v(vGq+4)}")
    a(f"v_add_f32 {v(vGq+8)}, {v(vGq+8)}, {v(vGq+12)}")
    a(f"v_add_f32 {v(vGq+2)}, {v(vGq+2)}, {v(vGq+6)}")
    a(f"v_add_f32 {v(vGq+10)}, {v(vGq+10)}, {v(vGq+14)}")
    a(f"v_add_f32 {v(vGq)}, {v(vGq)}, {v(vGq+8)}")
    a(f"v_add_f32 {v(vGq+2)}, {v(vGq+2)}, {v(vGq+10)}")
    a(f"v_cvt_pk_bf16_f32 {v(vGq)}, {v(vGq)}, {v(vGq+2)}")
    a(f"v_lshlrev_b32 {v(vT)}, 2, {v(vTID)}")
    a(f"v_add_u32 {v(vT)}, {Q_LDS}, {v(vT)}")
    a(f"ds_write_b32 {v(vT)}, {v(vGq)}")
    vKA = 32
    a(f"v_and_b32 {v(vT)}, 3, {v(vN)}")
    a(f"v_xor_b32 {v(vT)}, {v(vG)}, {v(vT)}")
    a(f"v_lshrrev_b32 {v(vT+1)}, 2, {v(vN)}")
    a(f"v_lshl_or_b32 {v(vT)}, {v(vT+1)}, 2, {v(vT)}")
    a(f"v_lshlrev_b32 {v(vT)}, 4, {v(vT)}")
    a(f"v_lshl_add_u32 {v(vT)}, {v(vN)}, 9, {v(vT)}")
    a(f"s_lshl_b32 {s(sT0)}, {s(sW)}, 14")
    a(f"v_add_u32 {v(vKA)}, {s(sT0)}, {v(vT)}")
    for tt in range(1, 4):
        a(f"v_xor_b32 {v(vKA+tt)}, {tt << 6}, {v(vKA)}")
    a(f"v_and_b32 {v(vT)}, 1, {v(vN)}")
    a(f"v_lshlrev_b32 {v(vT)}, 9, {v(vT)}")
    a(f"v_lshl_add_u32 {v(vT)}, {v(vG)}, 4, {v(vT)}")
    a(f"v_add_u32 {v(vT)}, {Q_LDS}, {v(vT)}")
    vKF = 64
    for kb in range(2):
        for t in range(8):
            a(f"ds_read_b128 {v(vKF + 4*(8*kb+t), 4)}, {v(vKA + (t & 3))} offset:{kb*8192 + (t >> 2)*256}")
    a("s_waitcnt lgkmcnt(0)")
    a("s_barrier")
    vQF = 128
    for t in range(8):
        a(f"ds_read_b128 {v(vQF+4*t,4)}, {v(vT)} offset:{64*t}")
    vSc = 160
    for t in range(8):
        a(f"s_waitcnt lgkmcnt({7-t})")
        for kb in range(2):
            c = "0" if t == 0 else v(vSc+4*kb, 4)
            a(f"v_mfma_f32_16x16x32_bf16 {v(vSc+4*kb,4)}, {v(vKF + 4*(8*kb+t),4)}, {v(vQF+4*t,4)}, {c}")
    vPk = 168
    vZ = 172
    for i in range(4):
        a(f"v_cvt_pk_bf16_f32 {v(vPk+i)}, {v(vSc+2*i)}, {v(vSc+2*i+1)}")
    for i in range(4):
        a(f"v_lshlrev_b32 {v(vZ+2*i)}, 16, {v(vPk+i)}")
        a(f"v_and_b32 {v(vZ+2*i+1)}, 0xffff0000, {v(vPk+i)}")
    vM, vMt, vLs = 180, 181, 182
    a(f"v_max3_f32 {v(vM)}, {v(vZ)}, {v(vZ+1)}, {v(vZ+2)}")
    a(f"v_max3_f32 {v(vM)}, {v(vM)}, {v(vZ+3)}, {v(vZ+4)}")
    a(f"v_max3_f32 {v(vM)}, {v(vM)}, {v(vZ+5)}, {v(vZ+6)}")
    a(f"v_max_f32 {v(vM)}, {v(vM)}, {v(vZ+7)}")
    g_allreduce("v_max_f32", vM, vMt)
    vLa = 183
    a(f"v_lshlrev_b32 {v(vLa)}, 2, {v(vL)}")
    a(f"s_lshl_b32 {s(sT0)}, {s(sW)}, 8")
    a(f"v_add_u32 {v(vT)}, {s(sT0)}, {v(vLa)}")
    a(f"ds_write_b32 {v(vT)}, {v(vM)} offset:{MX_LDS - 131072}") if False else None
    a(f"v_add_u32 {v(vT+1)}, {MX_LDS}, {v(vT)}")
    a(f"ds_write_b32 {v(vT+1)}, {v(vM)}")
    a(f"v_add_u32 {v(vT+2)}, {MX_LDS}, {v(vLa)}")
    a("s_waitcnt lgkmcnt(0)")
    a("s_barrier")
    for i in range(4):
        a(f"ds_read_b32 {v(vT+4+i)}, {v(vT+2)} offset:{256*i}")
    a("s_waitcnt lgkmcnt(0)")
    a(f"v_max3_f32 {v(vM)}, {v(vT+4)}, {v(vT+5)}, {v(vT+6)}")
    a(f"v_max_f32 {v(vM)}, {v(vM)}, {v(vT+7)}")
    CSC = LOG2E / 16.0
    a(f"s_mov_b32 {s(sT0)}, {f32(CSC)}")
    for i in range(8):
        a(f"v_sub_f32 {v(vZ+i)}, {v(vZ+i)}, {v(vM)}")
    for i in range(8):
        a(f"v_mul_f32 {v(vZ+i)}, {s(sT0)}, {v(vZ+i)}")
    for i in range(8):
        a(f"v_exp_f32 {v(vZ+i)}, {v(vZ+i)}")
    a(f"v_mul_f32 {v(vM)}, {s(sT0)}, {v(vM)}")
    a(f"v_add_f32 {v(vLs)}, {v(vZ)}, {v(vZ+1)}")
    for i in range(2, 8):
        a(f"v_add_f32 {v(vLs)}, {v(vLs)}, {v(vZ+i)}")
    for i in range(4):
        a(f"v_cvt_pk_bf16_f32 {v(vPk+i)}, {v(vZ+2*i)}, {v(vZ+2*i+1)}")
    g_allreduce("v_add_f32", vLs, vMt)
    a(f"s_lshl_b32 {s(sT1)}, {s(sW)}, 10")
    a(f"v_lshlrev_b32 {v(vT+3)}, 4, {v(vL)}")
    a(f"v_add_u32 {v(vT+3)}, {PX_LDS}, {v(vT+3)}")
    a(f"v_add_u32 {v(vT+4)}, {s(sT1)}, {v(vT+3)}")
    a(f"ds_write_b128 {v(vT+4)}, {v(vPk,4)}")
    a(f"v_add_u32 {v(vT+1)}, {LS_LDS - MX_LDS}, {v(vT+1)}")
    a(f"ds_write_b32 {v(vT+1)}, {v(vLs)}")
    a(f"v_add_u32 {v(vT+2)}, {LS_LDS - MX_LDS}, {v(vT+2)}")
    a("s_waitcnt lgkmcnt(0)")
    a("s_barrier")
    vP = 184
    for i in range(4):
        a(f"ds_read_b128 {v(vP+4*i,4)}, {v(vT+3)} offset:{1024*i}")
    for i in range(4):
        a(f"ds_read_b32 {v(vT+4+i)}, {v(vT+2)} offset:{256*i}")
    a("s_waitcnt lgkmcnt(0)")
    a(f"v_add_f32 {v(vLs)}, {v(vT+4)}, {v(vT+5)}")
    a(f"v_add_f32 {v(vT+6)}, {v(vT+6)}, {v(vT+7)}")
    a(f"v_add_f32 {v(vLs)}, {v(vLs)}, {v(vT+6)}")
    stamp()

    NT = {0: 8, 1: 12, 2: 0}
    def tail_dma():
        a(f"s_cmp_eq_u32 {s(sROLE)}, 2")
        a("s_cbranch_scc1 L_tail_done")
        a(f"s_cmp_eq_u32 {s(sROLE)}, 1")
        a("s_cbranch_scc1 L_tail_f")
        srd(S_WA, pWO, 4096*448*2)
        a(f"v_lshrrev_b32 {v(vT)}, 3, {v(vL)}")
        a(f"v_and_b32 {v(vT+1)}, 7, {v(vL)}")
        a(f"v_bfe_u32 {v(vT+2)}, {v(vT)}, 1, 1")
        a(f"v_lshlrev_b32 {v(vT+2)}, 1, {v(vT+2)}")
        a(f"v_xor_b32 {v(vT+1)}, {v(vT+1)}, {v(vT+2)}")
        a(f"v_xor_b32 {v(vT+2)}, 4, {v(vT+1)}")
        a(f"v_mul_u32_u24 {v(vT)}, 896, {v(vT)}")
        a(f"v_lshl_add_u32 {v(vT+1)}, {v(vT+1)}, 4, {v(vT)}")
        a(f"v_lshl_add_u32 {v(vT+2)}, {v(vT+2)}, 4, {v(vT)}")
        a(f"s_lshl_b32 {s(sT0)}, {s(sH)}, 8")
        a(f"s_lshl_b32 {s(sT1)}, {s(sW)}, 6")
        a(f"s_add_u32 {s(sT0)}, {s(sT0)}, {s(sT1)}")
        a(f"s_mul_i32 {s(sT0)}, {s(sT0)}, 896")
        a(f"s_lshl_b32 {s(sT1)}, {s(sC7)}, 7")
        a(f"s_add_u32 {s(sT0)}, {s(sT0)}, {s(sT1)}")
        a(f"s_lshl_b32 {s(sT1)}, {s(sW)}, 14")
        for i in range(8):
            a(f"s_mov_b32 m0, {s(sT1)}")
            a(f"s_add_u32 {s(sT1)}, {s(sT1)}, 1024")
            a(f"buffer_load_dwordx4 {v(vT+1+(i&1))}, {s(S_WA,4)}, {s(sT0)} offen {cfg.pol_w} lds")
            a(f"s_add_u32 {s(sT0)}, {s(sT0)}, {8*896}")
        a("s_branch L_tail_done")
        a.label("L_tail_f")
        srd(S_WA, pG, 448*1792*2)
        srd(S_WB, pU, 448*1792*2)
        srd(S_WC, pD, 1792*448*2)
        a(f"v_lshrrev_b32 {v(vT)}, 1, {v(vL)}")
        a(f"v_bfe_u32 {v(vT+1)}, {v(vT)}, 3, 1")
        a(f"v_lshlrev_b32 {v(vT+1)}, 2, {v(vT+1)}")
        a(f"v_xor_b32 {v(vT)}, {v(vT)}, {v(vT+1)}")
        a(f"v_mul_u32_u24 {v(vT)}, 3584, {v(vT)}")
        a(f"v_and_b32 {v(vT+1)}, 1, {v(vL)}")
        a(f"v_lshl_add_u32 {v(vT)}, {v(vT+1)}, 4, {v(vT)}")
        a(f"s_mul_i32 {s(sT0)}, {s(sW)}, {32*3584}")
        a(f"s_lshl_b32 {s(sT1)}, {s(sF)}, 5")
        a(f"s_add_u32 {s(sT0)}, {s(sT0)}, {s(sT1)}")
        a(f"s_lshl_b32 {s(sT1)}, {s(sW)}, 14")
        for m in range(4):
            if m == 3:
                a(f"s_cmp_ge_u32 {s(sW)}, 2")
                a(f"s_cselect_b32 {s(sT2)}, {4*32*3584}, 0")
                a(f"s_sub_u32 {s(sT0)}, {s(sT0)}, {s(sT2)}")
                a(f"s_cmp_ge_u32 {s(sW)}, 2")
                a(f"s_cselect_b32 {s(sT2)}, 1024, 0")
                a(f"s_sub_u32 {s(sT1)}, {s(sT1)}, {s(sT2)}")
            a(f"s_mov_b32 m0, {s(sT1)}")
            a(f"s_add_u32 {s(sT2)}, {s(sT1)}, 4096")
            a(f"buffer_load_dwordx4 {v(vT)}, {s(S_WA,4)}, {s(sT0)} offen {cfg.pol_w} lds")
            a(f"s_mov_b32 m0, {s(sT2)}")
            a(f"s_add_u32 {s(sT1)}, {s(sT1)}, 1024")
            a(f"buffer_load_dwordx4 {v(vT)}, {s(S_WB,4)}, {s(sT0)} offen {cfg.pol_w} lds")
            a(f"s_add_u32 {s(sT0)}, {s(sT0)}, {4*32*3584}")
        a(f"s_lshl_b32 {s(sT0)}, {s(sF)}, 4")
        a(f"s_mul_i32 {s(sT0)}, {s(sT0)}, 896")
        a(f"s_lshl_b32 {s(sT1)}, {s(sW)}, 10")
        a(f"s_add_u32 {s(sT1)}, {s(sT1)}, {WQ_LDS}")
        a(f"s_lshl_b32 {s(sT3)}, {s(sW)}, 6")
        for m in range(4):
            if m == 3:
                a(f"s_cmp_ge_u32 {s(sW)}, 2")
                a(f"s_cselect_b32 {s(sT2)}, 256, 0")
                a(f"s_sub_u32 {s(sT3)}, {s(sT3)}, {s(sT2)}")
                a(f"s_cmp_ge_u32 {s(sW)}, 2")
                a(f"s_cselect_b32 {s(sT2)}, 4096, 0")
                a(f"s_sub_u32 {s(sT1)}, {s(sT1)}, {s(sT2)}")
            a(f"v_add_u32 {v(vT)}, {s(sT3)}, {v(vL)}")
            a(f"v_mul_u32_u24 {v(vT+1)}, 1171, {v(vT)}")
            a(f"v_lshrrev_b32 {v(vT+1)}, 16, {v(vT+1)}")
            a(f"v_mul_u32_u24 {v(vT+2)}, 56, {v(vT+1)}")
            a(f"v_sub_u32 {v(vT)}, {v(vT)}, {v(vT+2)}")
            a(f"v_bfe_u32 {v(vT+2)}, {v(vT+1)}, 1, 2")
            a(f"v_lshlrev_b32 {v(vT+2)}, 1, {v(vT+2)}")
            a(f"v_xor_b32 {v(vT)}, {v(vT)}, {v(vT+2)}")
            a(f"v_mul_u32_u24 {v(vT+1)}, 896, {v(vT+1)}")
            a(f"v_lshl_add_u32 {v(vT+3+m)}, {v(vT)}, 4, {v(vT+1)}")
            a(f"s_mov_b32 m0, {s(sT1)}")
            a(f"s_add_u32 {s(sT1)}, {s(sT1)}, 4096")
            a(f"buffer_load_dwordx4 {v(vT+3+m)}, {s(S_WC,4)}, {s(sT0)} offen {cfg.pol_w} lds")
            a(f"s_add_u32 {s(sT3)}, {s(sT3)}, 256")
        a.label("L_tail_done")
    nw = [0]
    def wait_vm(base, tail_issued):
        if not tail_issued:
            a(f"s_waitcnt vmcnt({base})"); return
        k = nw[0]; nw[0] += 1
        a(f"s_cmp_eq_u32 {s(sROLE)}, 0")
        a(f"s_cbranch_scc1 L_wv{k}_w")
        a(f"s_cmp_eq_u32 {s(sROLE)}, 1")
        a(f"s_cbranch_scc1 L_wv{k}_f")
        a(f"s_waitcnt vmcnt({base})")
        a(f"s_branch L_wv{k}_d")
        a.label(f"L_wv{k}_f")
        a(f"s_waitcnt vmcnt({base + NT[1]})")
        a(f"s_branch L_wv{k}_d")
        a.label(f"L_wv{k}_w")
        a(f"s_waitcnt vmcnt({base + NT[0]})")
        a.label(f"L_wv{k}_d")

    if cfg.tail_pos == 0:
        tail_dma()
    vVA = 32
    a(f"v_lshrrev_b32 {v(vR)}, 2, {v(vN)}")
    a(f"v_and_b32 {v(vC)}, 3, {v(vN)}")
    a(f"v_lshl_add_u32 {v(vT)}, {v(vG)}, 2, {v(vR)}")
    a(f"v_bfe_u32 {v(vT+1)}, {v(vT)}, 1, 2")
    a(f"v_lshlrev_b32 {v(vT+1)}, 5, {v(vT+1)}")
    a(f"v_lshl_add_u32 {v(vT+1)}, {v(vC)}, 3, {v(vT+1)}")
    a(f"v_lshl_add_u32 {v(vT)}, {v(vT)}, 7, {v(vT+1)}")
    a(f"s_lshl_b32 {s(sT0)}, {s(sW)}, 14")
    a(f"s_add_u32 {s(sT0)}, {s(sT0)}, {V_LDS}")
    a(f"v_add_u32 {v(vVA)}, {s(sT0)}, {v(vT)}")
    for db in range(1, 4):
        a(f"v_xor_b32 {v(vVA+db)}, {db << 5}, {v(vVA)}")
    vVF = 64
    vO = 200
    for blk in range(4):
        if blk == 2:
            wait_vm(4, cfg.tail_pos == 0)
            if cfg.tail_pos == 1:
                tail_dma()
        if blk == 3:
            wait_vm(0, cfg.tail_pos <= 1)
            if cfg.tail_pos == 2:
                tail_dma()
            stamp()
        fb = vVF + 16 * (blk & 1)
        for db in range(4):
            a(f"ds_read_b64_tr_b16 {v(fb+4*db,2)}, {v(vVA+db)} offset:{blk*4096}")
            a(f"ds_read_b64_tr_b16 {v(fb+4*db+2,2)}, {v(vVA+db)} offset:{blk*4096+2048}")
        for db in range(4):
            a(f"s_waitcnt lgkmcnt({6-2*db})")
            c = "0" if blk == 0 else v(vO+4*db, 4)
            a(f"v_mfma_f32_16x16x32_bf16 {v(vO+4*db,4)}, {v(fb+4*db,4)}, {v(vP+4*blk,4)}, {c}")
    a(f"v_bfe_u32 {v(vT)}, {v(vN)}, 1, 2")
    a(f"v_cmp_eq_u32 {s(sM1,2)}, 1, {v(vT)}")
    a(f"v_cmp_eq_u32 {s(sM2,2)}, 2, {v(vT)}")
    a(f"v_cmp_eq_u32 {s(sM3,2)}, 3, {v(vT)}")
    a(f"v_and_b32 {v(vT+1)}, 1, {v(vN)}")
    a(f"v_lshlrev_b32 {v(vT+1)}, 14, {v(vT+1)}")
    a(f"v_lshl_add_u32 {v(vT+1)}, {v(vT)}, 5, {v(vT+1)}")
    a(f"v_lshl_add_u32 {v(vT+1)}, {v(vG)}, 3, {v(vT+1)}")
    a(f"s_lshl_b32 {s(sT0)}, {s(sJ)}, 15")
    a(f"s_lshl_b32 {s(sT1)}, {s(sSP)}, 9")
    a(f"s_add_u32 {s(sT0)}, {s(sT0)}, {s(sT1)}")
    a(f"s_lshl_b32 {s(sT1)}, {s(sW)}, 7")
    a(f"s_add_u32 {s(sT0)}, {s(sT0)}, {s(sT1)}")
    a(f"s_add_u32 {s(sT0)}, {s(sT0)}, {WS_O}")
    a(f"v_add_u32 {v(vT+1)}, {s(sT0)}, {v(vT+1)}")
    a(f"v_mov_b32 {v(vT+2)}, {OOB}")
    a(f"v_cmp_gt_u32 vcc, 8, {v(vN)}")
    a(f"v_cndmask_b32 {v(vT+1)}, {v(vT+2)}, {v(vT+1)}, vcc")
    vPo = 64
    for db in range(4):
        a(f"v_cvt_pk_bf16_f32 {v(vPo+2*db)}, {v(vO+4*db)}, {v(vO+4*db+1)}")
        a(f"v_cvt_pk_bf16_f32 {v(vPo+2*db+1)}, {v(vO+4*db+2)}, {v(vO+4*db+3)}")
    for hh in range(2):
        a(f"v_cndmask_b32 {v(vPo+hh)}, {v(vPo+hh)}, {v(vPo+2+hh)}, {s(sM1,2)}")
        a(f"v_cndmask_b32 {v(vPo+hh)}, {v(vPo+hh)}, {v(vPo+4+hh)}, {s(sM2,2)}")
        a(f"v_cndmask_b32 {v(vPo+hh)}, {v(vPo+hh)}, {v(vPo+6+hh)}, {s(sM3,2)}")
        a(f"v_min_u32 {v(vPo+hh)}, -2, {v(vPo+hh)}")
    a(f"buffer_store_dwordx2 {v(vPo,2)}, {v(vT+1)}, {s(S_WS,4)}, 0 offen sc1")
    a(f"s_lshl_b32 {s(sT0)}, {s(sJ)}, 10")
    a(f"s_lshl_b32 {s(sT1)}, {s(sSP)}, 4")
    a(f"s_add_u32 {s(sT0)}, {s(sT0)}, {s(sT1)}")
    a(f"s_add_u32 {s(sT0)}, {s(sT0)}, {WS_ML}")
    a(f"v_lshlrev_b32 {v(vT)}, 9, {v(vL)}")
    a(f"v_add_u32 {v(vT)}, {s(sT0)}, {v(vT)}")
    a(f"s_cmp_eq_u32 {s(sW)}, 0")
    a(f"s_cselect_b32 {s(sT0)}, 2, 0")
    a(f"v_cmp_gt_u32 vcc, {s(sT0)}, {v(vL)}")
    a(f"v_cndmask_b32 {v(vT)}, {v(vT+2)}, {v(vT)}, vcc")
    a(f"v_min_u32 {v(vPo+2)}, -2, {v(vM)}")
    a(f"v_min_u32 {v(vPo+3)}, -2, {v(vLs)}")
    a(f"buffer_store_dwordx2 {v(vPo+2,2)}, {v(vT)}, {s(S_WS,4)}, 0 offen sc1")
    stamp()

    a(f"s_cmp_eq_u32 {s(sROLE)}, 1")
    a("s_cbranch_scc1 L_role_f")
    a(f"s_cmp_eq_u32 {s(sROLE)}, 2")
    a("s_cbranch_scc1 L_role_o")
    a.c("W role")
    vAa = 32
    a(f"v_lshlrev_b32 {v(vAa)}, 9, {v(vN)}")
    a(f"v_lshl_add_u32 {v(vAa)}, {v(vG)}, 4, {v(vAa)}")
    a(f"s_lshl_b32 {s(sT0)}, {s(sH)}, 14")
    a(f"s_lshl_b32 {s(sT1)}, {s(sW)}, 7")
    a(f"s_add_u32 {s(sT0)}, {s(sT0)}, {s(sT1)}")
    a(f"s_add_u32 {s(sT0)}, {s(sT0)}, {WS_O}")
    a(f"v_add_u32 {v(vAa)}, {s(sT0)}, {v(vAa)}")
    a(f"v_add_u32 {v(vAa+1)}, 8192, {v(vAa)}")
    a(f"v_and_b32 {v(vAa+2)}, 31, {v(vL)}")
    a(f"v_lshlrev_b32 {v(vAa+2)}, 4, {v(vAa+2)}")
    a(f"s_lshl_b32 {s(sT0)}, {s(sH)}, 9")
    a(f"s_add_u32 {s(sT0)}, {s(sT0)}, {WS_ML}")
    a(f"v_add_u32 {v(vAa+2)}, {s(sT0)}, {v(vAa+2)}")
    vBw = 36
    a(f"v_bfe_u32 {v(vT)}, {v(vR)}, 1, 1")
    a(f"v_and_b32 {v(vT+1)}, 1, {v(vG)}")
    a(f"v_lshl_or_b32 {v(vT)}, {v(vT+1)}, 1, {v(vT)}")
    a(f"v_lshlrev_b32 {v(vT)}, 5, {v(vT)}")
    a(f"v_lshl_add_u32 {v(vT)}, {v(vC)}, 3, {v(vT)}")
    a(f"v_lshl_add_u32 {v(vT+1)}, {v(vG)}, 3, {v(vR)}")
    a(f"v_lshl_add_u32 {v(vT)}, {v(vT+1)}, 7, {v(vT)}")
    a(f"s_lshl_b32 {s(sT0)}, {s(sW)}, 14")
    a(f"v_add_u32 {v(vBw)}, {s(sT0)}, {v(vT)}")
    for nb in range(1, 4):
        a(f"v_xor_b32 {v(vBw+nb)}, {nb << 5}, {v(vBw)}")
    vBp = 40
    a(f"v_lshlrev_b32 {v(vBp)}, 4, {v(vG)}")
    a("s_waitcnt vmcnt(2)")
    vWF = 64
    for tt in range(2):
        for nb in range(4):
            d = vWF + 16*tt + 4*nb
            a(f"ds_read_b64_tr_b16 {v(d,2)}, {v(vBw+nb)} offset:{tt*4096}")
            a(f"ds_read_b64_tr_b16 {v(d+2,2)}, {v(vBw+nb)} offset:{tt*4096+512}")
    vAF = 96
    vML = 112
    a.label("L_w_retry")
    for sb in range(2):
        for tt in range(2):
            a(f"buffer_load_dwordx4 {v(vAF + 8*sb + 4*tt, 4)}, {v(vAa+sb)}, {s(S_WS,4)}, 0 offen offset:{64*tt} sc1")
    a(f"buffer_load_dwordx2 {v(vML,2)}, {v(vAa+2)}, {s(S_WS,4)}, 0 offen sc1")
    a("s_waitcnt vmcnt(0)")
    a(f"v_max3_u32 {v(vT)}, {v(vAF)}, {v(vAF+1)}, {v(vAF+2)}")
    for i in range(3, 15, 2):
        a(f"v_max3_u32 {v(vT)}, {v(vT)}, {v(vAF+i)}, {v(vAF+i+1)}")
    a(f"v_max3_u32 {v(vT)}, {v(vT)}, {v(vAF+15)}, {v(vML)}")
    a(f"v_max_u32 {v(vT)}, {v(vT)}, {v(vML+1)}")
    a(f"v_cmp_eq_u32 vcc, -1, {v(vT)}")
    a("s_and_b64 vcc, exec, vcc")
    spin_check("L_w_retry", "L_w_ok")
    stamp()
    vD = 116
    a("s_waitcnt lgkmcnt(0)")
    for tt in range(2):
        for sb in range(2):
            for nb in range(4):
                d = vD + 16*sb + 4*nb
                c = "0" if tt == 0 else v(d, 4)
                a(f"v_mfma_f32_16x16x32_bf16 {v(d,4)}, {v(vAF + 8*sb + 4*tt,4)}, {v(vWF + 16*tt + 4*nb,4)}, {c}")
    vMx, vFs, vLl = 148, 149, 150
    a(f"v_mov_b32 {v(vMx)}, {v(vML)}")
    row_allreduce("v_max_f32", vMx)
    a(f"v_mov_b32 {v(vT)}, {v(vMx)}")
    a(f"v_permlane16_swap_b32 {v(vMx)}, {v(vT)}")
    a(f"v_max_f32 {v(vMx)}, {v(vMx)}, {v(vT)}")
    a(f"v_sub_f32 {v(vFs)}, {v(vML)}, {v(vMx)}")
    a(f"v_exp_f32 {v(vFs)}, {v(vFs)}")
    a(f"v_mul_f32 {v(vLl)}, {v(vFs)}, {v(vML+1)}")
    row_allreduce("v_add_f32", vLl)
    a(f"v_mov_b32 {v(vT)}, {v(vLl)}")
    a(f"v_permlane16_swap_b32 {v(vLl)}, {v(vT)}")
    a(f"v_add_f32 {v(vLl)}, {v(vLl)}, {v(vT)}")
    a(f"v_rcp_f32 {v(vLl)}, {v(vLl)}")
    a(f"v_mul_f32 {v(vFs)}, {v(vFs)}, {v(vLl)}")
    vCf = 152
    for sb in range(2):
        for r in range(4):
            a(f"ds_bpermute_b32 {v(vCf+4*sb+r)}, {v(vBp)}, {v(vFs)} offset:{64*sb + 4*r}")
    a("s_waitcnt lgkmcnt(0)")
    vY = 160
    for nb in range(4):
        a(f"v_mul_f32 {v(vY+nb)}, {v(vCf)}, {v(vD+4*nb)}")
        for k in range(1, 8):
            sb, r = k >> 2, k & 3
            a(f"v_fmac_f32 {v(vY+nb)}, {v(vCf+k)}, {v(vD+16*sb+4*nb+r)}")
    a(f"v_permlane16_swap_b32 {v(vY)}, {v(vY+1)}")
    a(f"v_permlane16_swap_b32 {v(vY+2)}, {v(vY+3)}")
    a(f"v_add_f32 {v(vY)}, {v(vY)}, {v(vY+1)}")
    a(f"v_add_f32 {v(vY+2)}, {v(vY+2)}, {v(vY+3)}")
    a(f"v_permlane32_swap_b32 {v(vY)}, {v(vY+2)}")
    a(f"v_add_f32 {v(vY)}, {v(vY)}, {v(vY+2)}")
    a(f"s_lshl_b32 {s(sT0)}, {s(sW)}, 8")
    a(f"s_add_u32 {s(sT0)}, {s(sT0)}, {RED_LDS}")
    a(f"v_lshlrev_b32 {v(vT)}, 2, {v(vL)}")
    a(f"v_add_u32 {v(vT)}, {s(sT0)}, {v(vT)}")
    a(f"ds_write_b32 {v(vT)}, {v(vY)}")
    a("s_waitcnt lgkmcnt(0)")
    a("s_barrier")
    a(f"s_cmp_lg_u32 {s(sW)}, 0")
    a("s_cbranch_scc1 L_end")
    a(f"v_lshlrev_b32 {v(vT)}, 3, {v(vL)}")
    a(f"v_add_u32 {v(vT)}, {RED_LDS}, {v(vT)}")
    for i in range(4):
        a(f"ds_read_b64 {v(vY+2*i,2)}, {v(vT)} offset:{256*i}")
    a(f"s_lshl_b32 {s(sT0)}, {s(sC7)}, 7")
    a(f"v_lshlrev_b32 {v(vT+1)}, 2, {v(vL)}")
    a(f"v_add_u32 {v(vT+1)}, {s(sT0)}, {v(vT+1)}")
    a(f"s_cmp_eq_u32 {s(sH)}, 0")
    a(f"s_cselect_b32 {s(sT1)}, 128, 0")
    a(f"s_add_u32 {s(sT1)}, {s(sT1)}, {s(sT0)}")
    a(f"v_mov_b32 {v(vT+2)}, {OOB}")
    a(f"v_cmp_gt_u32 vcc, {s(sT1)}, {v(vT+1)}")
    a(f"v_cndmask_b32 {v(vT+2)}, {v(vT+2)}, {v(vT+1)}, vcc")
    a(f"buffer_load_dword {v(vT+3)}, {v(vT+2)}, {s(S_X,4)}, 0 offen")
    a("s_waitcnt lgkmcnt(0)")
    a(f"v_add_f32 {v(vY)}, {v(vY)}, {v(vY+2)}")
    a(f"v_add_f32 {v(vY+1)}, {v(vY+1)}, {v(vY+3)}")
    a(f"v_add_f32 {v(vY+4)}, {v(vY+4)}, {v(vY+6)}")
    a(f"v_add_f32 {v(vY+5)}, {v(vY+5)}, {v(vY+7)}")
    a(f"v_add_f32 {v(vY)}, {v(vY)}, {v(vY+4)}")
    a(f"v_add_f32 {v(vY+1)}, {v(vY+1)}, {v(vY+5)}")
    a("s_waitcnt vmcnt(0)")
    a(f"v_lshlrev_b32 {v(vT+4)}, 16, {v(vT+3)}")
    a(f"v_and_b32 {v(vT+5)}, 0xffff0000, {v(vT+3)}")
    a(f"v_add_f32 {v(vY)}, {v(vY)}, {v(vT+4)}")
    a(f"v_add_f32 {v(vY+1)}, {v(vY+1)}, {v(vT+5)}")
    a(f"v_cvt_pk_bf16_f32 {v(vY)}, {v(vY)}, {v(vY+1)}")
    a(f"v_min_u32 {v(vY)}, -2, {v(vY)}")
    a(f"s_mul_i32 {s(sT1)}, {s(sH)}, 896")
    a(f"s_add_u32 {s(sT1)}, {s(sT1)}, {WS_Y}")
    a(f"v_add_u32 {v(vT+1)}, {s(sT1)}, {v(vT+1)}")
    a(f"v_mov_b32 {v(vT+2)}, {OOB}")
    a(f"v_cmp_gt_u32 vcc, 32, {v(vL)}")
    a(f"v_cndmask_b32 {v(vT+1)}, {v(vT+2)}, {v(vT+1)}, vcc")
    a(f"buffer_store_dword {v(vY)}, {v(vT+1)}, {s(S_WS,4)}, 0 offen sc1")
    stamp()
    stamp_flush()
    a("s_branch L_end")

    a.label("L_role_f")
    a.c("F role")
    nstamp[0] = 8
    vYa = 32
    a(f"v_mul_u32_u24 {v(vYa)}, 896, {v(vN)}")
    a(f"v_lshl_add_u32 {v(vYa)}, {v(vG)}, 4, {v(vYa)}")
    a(f"s_lshl_b32 {s(sT0)}, {s(sW)}, 6")
    a(f"s_add_u32 {s(sT0)}, {s(sT0)}, {WS_Y}")
    a(f"v_add_u32 {v(vYa)}, {s(sT0)}, {v(vYa)}")
    a(f"s_cmp_ge_u32 {s(sW)}, 2")
    a(f"s_cselect_b32 {s(sT1)}, 0, 768")
    a(f"v_add_u32 {v(vYa+1)}, {s(sT1)}, {v(vYa)}")
    vBg = 34
    a(f"v_lshl_add_u32 {v(vT)}, {v(vG)}, 3, {v(vR)}")
    a(f"v_lshlrev_b32 {v(vT)}, 5, {v(vT)}")
    a(f"v_lshl_add_u32 {v(vT)}, {v(vC)}, 3, {v(vT)}")
    a(f"v_and_b32 {v(vT+1)}, 1, {v(vG)}")
    a(f"v_lshl_add_u32 {v(vT)}, {v(vT+1)}, 7, {v(vT)}")
    a(f"s_lshl_b32 {s(sT0)}, {s(sW)}, 14")
    a(f"v_add_u32 {v(vBg)}, {s(sT0)}, {v(vT)}")
    a(f"v_xor_b32 {v(vBg+1)}, 128, {v(vBg)}")
    vBd = 36
    a(f"v_lshl_add_u32 {v(vT)}, {v(vG)}, 2, {v(vR)}")
    a(f"v_bfe_u32 {v(vT+1)}, {v(vT)}, 1, 2")
    a(f"v_mul_u32_u24 {v(vT)}, 896, {v(vT)}")
    a(f"v_lshl_add_u32 {v(vT)}, {v(vC)}, 3, {v(vT)}")
    a(f"v_add_u32 {v(vT)}, {WQ_LDS}, {v(vT)}")
    a(f"s_mul_i32 {s(sT0)}, {s(sW)}, 7")
    for jj in range(7):
        a(f"s_add_u32 {s(sT1)}, {s(sT0)}, {jj}")
        a(f"v_xor_b32 {v(vT+2)}, {s(sT1)}, {v(vT+1)}")
        a(f"v_lshl_add_u32 {v(vBd+jj)}, {v(vT+2)}, 5, {v(vT)}")
    vONE = 44
    for i in range(4):
        a(f"v_mov_b32 {v(vONE+i)}, 0x3f803f80")
    a("s_waitcnt vmcnt(2)")
    vGF, vUF = 64, 80
    for m in range(4):
        a(f"ds_read_b64_tr_b16 {v(vGF+4*m,2)}, {v(vBg)} offset:{m*1024}")
        a(f"ds_read_b64_tr_b16 {v(vGF+4*m+2,2)}, {v(vBg+1)} offset:{m*1024}")
        a(f"ds_read_b64_tr_b16 {v(vUF+4*m,2)}, {v(vBg)} offset:{4096+m*1024}")
        a(f"ds_read_b64_tr_b16 {v(vUF+4*m+2,2)}, {v(vBg+1)} offset:{4096+m*1024}")
    a("s_waitcnt lgkmcnt(0)")
    vCSg, vCSu = 96, 100
    for m in range(3):
        a(f"v_mfma_f32_16x16x32_bf16 {v(vCSg,4)}, {v(vONE,4)}, {v(vGF+4*m,4)}, {'0' if m == 0 else v(vCSg,4)}")
        a(f"v_mfma_f32_16x16x32_bf16 {v(vCSu,4)}, {v(vONE,4)}, {v(vUF+4*m,4)}, {'0' if m == 0 else v(vCSu,4)}")
    a(f"s_cmp_ge_u32 {s(sW)}, 2")
    a("s_cbranch_scc1 L_f_cs3")
    a(f"v_mfma_f32_16x16x32_bf16 {v(vCSg,4)}, {v(vONE,4)}, {v(vGF+12,4)}, {v(vCSg,4)}")
    a(f"v_mfma_f32_16x16x32_bf16 {v(vCSu,4)}, {v(vONE,4)}, {v(vUF+12,4)}, {v(vCSu,4)}")
    a.label("L_f_cs3")
    a("s_nop 7")
    a(f"v_and_b32 {v(vT+1)}, 1, {v(vG)}")
    a(f"v_cmp_eq_u32 vcc, 0, {v(vT+1)}")
    a(f"v_cndmask_b32 {v(vT)}, {v(vCSu)}, {v(vCSg)}, vcc")
    a(f"s_lshl_b32 {s(sT0)}, {s(sW)}, 2")
    a(f"s_add_u32 {s(sT1)}, {s(sT0)}, {CS_LDS}")
    a(f"v_and_b32 {v(vT+1)}, 31, {v(vL)}")
    a(f"v_lshlrev_b32 {v(vT+1)}, 4, {v(vT+1)}")
    a(f"v_add_u32 {v(vT+1)}, {s(sT1)}, {v(vT+1)}")
    a(f"ds_write_b32 {v(vT+1)}, {v(vT)}")
    a("s_waitcnt lgkmcnt(0)")
    a("s_barrier")
    vU4 = 48
    a(f"v_and_b32 {v(vT)}, 3, {v(vN)}")
    a(f"v_lshl_add_u32 {v(vU4)}, {v(vG)}, 2, {v(vT)}")
    a(f"v_lshlrev_b32 {v(vU4)}, 4, {v(vU4)}")
    a(f"v_add_u32 {v(vT)}, {CS_LDS}, {v(vU4)}")
    a(f"ds_read_b128 {v(vCSg,4)}, {v(vT)}")
    a(f"ds_read_b128 {v(vCSu,4)}, {v(vT)} offset:256")
    vDF = 104
    for jj in range(7):
        a(f"ds_read_b64_tr_b16 {v(vDF+2*jj,2)}, {v(vBd+jj)}")
    a("s_waitcnt lgkmcnt(0)")
    a(f"v_add_f32 {v(vCSg)}, {v(vCSg)}, {v(vCSg+1)}")
    a(f"v_add_f32 {v(vCSg+2)}, {v(vCSg+2)}, {v(vCSg+3)}")
    a(f"v_add_f32 {v(vCSg)}, {v(vCSg)}, {v(vCSg+2)}")
    a(f"v_add_f32 {v(vCSu)}, {v(vCSu)}, {v(vCSu+1)}")
    a(f"v_add_f32 {v(vCSu+2)}, {v(vCSu+2)}, {v(vCSu+3)}")
    a(f"v_add_f32 {v(vCSu)}, {v(vCSu)}, {v(vCSu+2)}")
    vRw, vRr = 49, 50
    a(f"s_add_u32 {s(sT1)}, {s(sT0)}, {RED_LDS}")
    a(f"v_lshlrev_b32 {v(vRw)}, 4, {v(vL)}")
    a(f"v_add_u32 {v(vRw)}, {s(sT1)}, {v(vRw)}")
    a(f"v_add_u32 {v(vRr)}, {RED_LDS}, {v(vU4)}")
    a(f"v_mov_b32 {v(vRr+1)}, {RED_LDS}")
    vYF = 120
    a.label("L_f_retry")
    for m in range(3):
        a(f"buffer_load_dwordx4 {v(vYF+4*m,4)}, {v(vYa)}, {s(S_WS,4)}, 0 offen offset:{256*m} sc1")
    a(f"buffer_load_dwordx4 {v(vYF+12,4)}, {v(vYa+1)}, {s(S_WS,4)}, 0 offen sc1")
    a("s_waitcnt vmcnt(0)")
    a(f"v_max3_u32 {v(vT)}, {v(vYF)}, {v(vYF+1)}, {v(vYF+2)}")
    for i in range(3, 15, 2):
        a(f"v_max3_u32 {v(vT)}, {v(vT)}, {v(vYF+i)}, {v(vYF+i+1)}")
    a(f"v_max_u32 {v(vT)}, {v(vT)}, {v(vYF+15)}")
    a(f"v_cmp_eq_u32 vcc, -1, {v(vT)}")
    a("s_and_b64 vcc, exec, vcc")
    spin_check("L_f_retry", "L_f_ok")
    stamp()
    vDg, vDu, vGr, vS1 = 136, 140, 144, 148
    a(f"v_mov_b32 {v(vS1)}, 0")
    def f_step(m):
        c0 = (lambda r: "0" if m == 0 else v(r, 4))
        a(f"v_mfma_f32_16x16x32_bf16 {v(vDg,4)}, {v(vYF+4*m,4)}, {v(vGF+4*m,4)}, {c0(vDg)}")
        a(f"v_mfma_f32_16x16x32_bf16 {v(vDu,4)}, {v(vYF+4*m,4)}, {v(vUF+4*m,4)}, {c0(vDu)}")
        a(f"v_mfma_f32_16x16x32_bf16 {v(vGr,4)}, {v(vYF+4*m,4)}, {v(vYF+4*m,4)}, {c0(vGr)}")
        for i in range(4):
            a(f"v_dot2_f32_bf16 {v(vS1)}, {v(vYF+4*m+i)}, {v(vONE)}, {v(vS1)}")
    for m in range(3):
        f_step(m)
    a(f"s_cmp_ge_u32 {s(sW)}, 2")
    a("s_cbranch_scc1 L_f_m3")
    f_step(3)
    a.label("L_f_m3")
    a("s_nop 7")
    for d in (vDg, vDu, vGr):
        a(f"v_add_f32 {v(d)}, {v(d)}, {v(d+1)}")
        a(f"v_add_f32 {v(d+2)}, {v(d+2)}, {v(d+3)}")
        a(f"v_add_f32 {v(d)}, {v(d)}, {v(d+2)}")
    a(f"v_permlane16_swap_b32 {v(vDg)}, {v(vDu)}")
    a(f"v_permlane16_swap_b32 {v(vGr)}, {v(vS1)}")
    a(f"v_add_f32 {v(vDg)}, {v(vDg)}, {v(vDu)}")
    a(f"v_add_f32 {v(vGr)}, {v(vGr)}, {v(vS1)}")
    a(f"v_permlane32_swap_b32 {v(vDg)}, {v(vGr)}")
    a(f"v_add_f32 {v(vDg)}, {v(vDg)}, {v(vGr)}")
    a(f"v_mov_b32 {v(vT)}, {v(vDg)}")
    row_allreduce("v_add_f32", vT)
    a(f"v_cmp_gt_u32 vcc, 2, {v(vG)}")
    a(f"v_cndmask_b32 {v(vT)}, {v(vT)}, {v(vDg)}, vcc")
    a(f"ds_write_b32 {v(vRw)}, {v(vT)}")
    a("s_waitcnt lgkmcnt(0)")
    a("s_barrier")
    vq = 152
    a(f"ds_read_b128 {v(vq,4)}, {v(vRr)}")
    a(f"ds_read_b128 {v(vq+4,4)}, {v(vRr)} offset:256")
    a(f"ds_read_b128 {v(vq+8,4)}, {v(vRr+1)} offset:512")
    a(f"ds_read_b128 {v(vq+12,4)}, {v(vRr+1)} offset:768")
    a("s_waitcnt lgkmcnt(0)")
    for k in range(4):
        d = vq + 4*k
        a(f"v_add_f32 {v(d)}, {v(d)}, {v(d+1)}")
        a(f"v_add_f32 {v(d+2)}, {v(d+2)}, {v(d+3)}")
        a(f"v_add_f32 {v(d)}, {v(d)}, {v(d+2)}")
    vGs, vUs, vS2f, vS1f = vq, vq+4, vq+8, vq+12
    a(f"v_mul_f32 {v(vS1f)}, {f32(1.0/448)}, {v(vS1f)}")
    a(f"v_mul_f32 {v(vS2f)}, {f32(1.0/448)}, {v(vS2f)}")
    a(f"v_fma_f32 {v(vS2f)}, -{v(vS1f)}, {v(vS1f)}, {v(vS2f)}")
    a(f"v_max_f32 {v(vS2f)}, 0, {v(vS2f)}")
    round_bf16(vS2f, vS2f)
    a(f"v_add_f32 {v(vS2f)}, {f32(1e-5)}, {v(vS2f)}")
    round_bf16(vS2f, vS2f)
    a(f"v_sqrt_f32 {v(vS2f)}, {v(vS2f)}")
    round_bf16(vS2f, vS2f)
    a(f"v_rcp_f32 {v(vS2f)}, {v(vS2f)}")
    round_bf16(vS1f, vS1f)
    a(f"v_fma_f32 {v(vGs)}, -{v(vS1f)}, {v(vCSg)}, {v(vGs)}")
    a(f"v_fma_f32 {v(vUs)}, -{v(vS1f)}, {v(vCSu)}, {v(vUs)}")
    a(f"v_mul_f32 {v(vGs)}, {v(vGs)}, {v(vS2f)}")
    a(f"v_mul_f32 {v(vUs)}, {v(vUs)}, {v(vS2f)}")
    round_bf16(vGs, vGs)
    round_bf16(vUs, vUs)
    K0 = -2.0 * 0.7978845608028654 * LOG2E
    a(f"v_mul_f32 {v(vT)}, {v(vGs)}, {v(vGs)}")
    a(f"v_mul_f32 {v(vT)}, {f32(0.044715)}, {v(vT)}")
    a(f"v_add_f32 {v(vT)}, 1.0, {v(vT)}")
    a(f"v_mul_f32 {v(vT)}, {v(vT)}, {v(vGs)}")
    a(f"v_mul_f32 {v(vT)}, {f32(K0)}, {v(vT)}")
    a(f"v_exp_f32 {v(vT)}, {v(vT)}")
    a(f"v_add_f32 {v(vT)}, 1.0, {v(vT)}")
    a(f"v_rcp_f32 {v(vT)}, {v(vT)}")
    a(f"v_mul_f32 {v(vT)}, {v(vT)}, {v(vGs)}")
    round_bf16(vT, vT)
    a(f"v_mul_f32 {v(vT)}, {v(vT)}, {v(vUs)}")
    vHA = 168
    for e in range(4):
        a(f"v_mov_b32_dpp {v(vHA+2+e)}, {v(vT)} quad_perm:[{e},{e},{e},{e}] row_mask:0xf bank_mask:0xf")
    a(f"v_cvt_pk_bf16_f32 {v(vHA)}, {v(vHA+2)}, {v(vHA+3)}")
    a(f"v_cvt_pk_bf16_f32 {v(vHA+1)}, {v(vHA+4)}, {v(vHA+5)}")
    vZo = 176
    for jj in range(7):
        a(f"v_mfma_f32_16x16x16_bf16 {v(vZo+4*jj,4)}, {v(vHA,2)}, {v(vDF+2*jj,2)}, 0")
    a(f"v_cmp_eq_u32 {s(sM1,2)}, 1, {v(vG)}")
    a(f"v_cmp_eq_u32 {s(sM2,2)}, 2, {v(vG)}")
    a(f"v_cmp_eq_u32 {s(sM3,2)}, 3, {v(vG)}")
    a(f"s_mul_i32 {s(sT0)}, {s(sF)}, 1792")
    a(f"s_mul_i32 {s(sT1)}, {s(sW)}, 448")
    a(f"s_add_u32 {s(sT0)}, {s(sT0)}, {s(sT1)}")
    a(f"s_add_u32 {s(sT0)}, {s(sT0)}, {WS_Z}")
    a(f"v_lshlrev_b32 {v(vT+1)}, 2, {v(vL)}")
    a(f"v_add_u32 {v(vT+1)}, {s(sT0)}, {v(vT+1)}")
    a(f"v_add_u32 {v(vT+2)}, 256, {v(vT+1)}")
    a(f"v_mov_b32 {v(vT+3)}, {OOB}")
    a(f"v_cndmask_b32 {v(vT+2)}, {v(vT+2)}, {v(vT+3)}, {s(sM3,2)}")
    a(f"v_cndmask_b32 {v(vT+4)}, {v(vZo)}, {v(vZo+4)}, {s(sM1,2)}")
    a(f"v_cndmask_b32 {v(vT+4)}, {v(vT+4)}, {v(vZo+8)}, {s(sM2,2)}")
    a(f"v_cndmask_b32 {v(vT+4)}, {v(vT+4)}, {v(vZo+12)}, {s(sM3,2)}")
    a(f"v_cndmask_b32 {v(vT+5)}, {v(vZo+16)}, {v(vZo+20)}, {s(sM1,2)}")
    a(f"v_cndmask_b32 {v(vT+5)}, {v(vT+5)}, {v(vZo+24)}, {s(sM2,2)}")
    a(f"v_min_u32 {v(vT+4)}, -2, {v(vT+4)}")
    a(f"v_min_u32 {v(vT+5)}, -2, {v(vT+5)}")
    a(f"buffer_store_dword {v(vT+4)}, {v(vT+1)}, {s(S_WS,4)}, 0 offen sc1")
    a(f"buffer_store_dword {v(vT+5)}, {v(vT+2)}, {s(S_WS,4)}, 0 offen sc1")
    stamp()
    stamp_flush()
    a("s_branch L_end")

    a.label("L_role_o")
    a.c("O role")
    nstamp[0] = 8
    a(f"s_cmp_ge_u32 {s(sO)}, 28")
    a("s_cbranch_scc1 L_end")
    a(f"s_cmp_lg_u32 {s(sW)}, 0")
    a("s_cbranch_scc1 L_end")
    srd(S_OUT, pOUT, 896)
    vq4, vhd = 32, 33
    a(f"v_and_b32 {v(vq4)}, 3, {v(vL)}")
    a(f"v_lshrrev_b32 {v(vhd)}, 2, {v(vL)}")
    a(f"v_mul_u32_u24 {v(vT)}, 896, {v(vhd)}")
    a(f"v_lshl_add_u32 {v(vT)}, {v(vq4)}, 3, {v(vT)}")
    a(f"s_lshl_b32 {s(sT0)}, {s(sO)}, 5")
    a(f"s_add_u32 {s(sT0)}, {s(sT0)}, {WS_Y}")
    a(f"v_add_u32 {v(vT)}, {s(sT0)}, {v(vT)}")
    a(f"v_mul_u32_u24 {v(vT+1)}, 1792, {v(vhd)}")
    a(f"v_lshl_add_u32 {v(vT+1)}, {v(vq4)}, 4, {v(vT+1)}")
    a(f"s_lshl_b32 {s(sT0)}, {s(sO)}, 6")
    a(f"s_add_u32 {s(sT0)}, {s(sT0)}, {WS_Z}")
    a(f"v_add_u32 {v(vT+1)}, {s(sT0)}, {v(vT+1)}")
    vYo = 36
    a.label("L_oy_retry")
    a(f"buffer_load_dwordx2 {v(vYo,2)}, {v(vT)}, {s(S_WS,4)}, 0 offen sc1")
    a("s_waitcnt vmcnt(0)")
    a(f"v_max_u32 {v(vT+2)}, {v(vYo)}, {v(vYo+1)}")
    a(f"v_cmp_eq_u32 vcc, -1, {v(vT+2)}")
    a("s_and_b64 vcc, exec, vcc")
    spin_check("L_oy_retry", "L_oy_ok")
    vH = 40
    a(f"v_lshlrev_b32 {v(vH)}, 16, {v(vYo)}")
    a(f"v_and_b32 {v(vH+1)}, 0xffff0000, {v(vYo)}")
    a(f"v_lshlrev_b32 {v(vH+2)}, 16, {v(vYo+1)}")
    a(f"v_and_b32 {v(vH+3)}, 0xffff0000, {v(vYo+1)}")
    def quadcol_reduce(base):
        for r in (4, 8):
            for i in range(4):
                a(f"v_add_f32_dpp {v(base+i)}, {v(base+i)}, {v(base+i)} row_ror:{r} row_mask:0xf bank_mask:0xf")
        for sw in ("v_permlane16_swap_b32", "v_permlane32_swap_b32"):
            for i in range(4):
                a(f"v_mov_b32 {v(vT+4+i)}, {v(base+i)}")
            for i in range(4):
                a(f"{sw} {v(base+i)}, {v(vT+4+i)}")
            for i in range(4):
                a(f"v_add_f32 {v(base+i)}, {v(base+i)}, {v(vT+4+i)}")
    quadcol_reduce(vH)
    for i in range(4):
        round_bf16(vH+i, vH+i)
    vZ = 48
    a.label("L_oz_retry")
    for i in range(7):
        a(f"s_mov_b32 {s(sT2)}, {16*i*1792}")
        a(f"buffer_load_dwordx4 {v(vZ+4*i,4)}, {v(vT+1)}, {s(S_WS,4)}, {s(sT2)} offen sc1")
    a("s_waitcnt vmcnt(0)")
    a(f"v_max3_u32 {v(vT+2)}, {v(vZ)}, {v(vZ+1)}, {v(vZ+2)}")
    for i in range(3, 27, 2):
        a(f"v_max3_u32 {v(vT+2)}, {v(vT+2)}, {v(vZ+i)}, {v(vZ+i+1)}")
    a(f"v_max_u32 {v(vT+2)}, {v(vT+2)}, {v(vZ+27)}")
    a(f"v_cmp_eq_u32 vcc, -1, {v(vT+2)}")
    a("s_and_b64 vcc, exec, vcc")
    spin_check("L_oz_retry", "L_oz_ok")
    stamp()
    for i in range(1, 7):
        for k in range(4):
            a(f"v_add_f32 {v(vZ+k)}, {v(vZ+k)}, {v(vZ+4*i+k)}")
    quadcol_reduce(vZ)
    for i in range(4):
        round_bf16(vZ+i, vZ+i)
    for i in range(4):
        a(f"v_add_f32 {v(vZ+i)}, {v(vZ+i)}, {v(vH+i)}")
    a(f"v_cvt_pk_bf16_f32 {v(vZ)}, {v(vZ)}, {v(vZ+1)}")
    a(f"v_cvt_pk_bf16_f32 {v(vZ+1)}, {v(vZ+2)}, {v(vZ+3)}")
    a(f"s_lshl_b32 {s(sT0)}, {s(sO)}, 5")
    a(f"v_lshlrev_b32 {v(vT)}, 3, {v(vL)}")
    a(f"v_add_u32 {v(vT)}, {s(sT0)}, {v(vT)}")
    a(f"v_mov_b32 {v(vT+1)}, {OOB}")
    a(f"v_cmp_gt_u32 vcc, 4, {v(vL)}")
    a(f"v_cndmask_b32 {v(vT)}, {v(vT+1)}, {v(vT)}, vcc")
    a(f"buffer_store_dwordx2 {v(vZ,2)}, {v(vT)}, {s(S_OUT,4)}, 0 offen")
    a(f"s_cmp_lg_u32 {s(sO)}, 0")
    a("s_cbranch_scc1 L_o_noepoch")
    a(f"v_mov_b32 {v(vT+2)}, {s(sTAG)}")
    a(f"v_mov_b32 {v(vT+3)}, {WS_EPOCH}")
    a(f"v_cmp_eq_u32 vcc, 0, {v(vL)}")
    a(f"v_cndmask_b32 {v(vT+3)}, {v(vT+1)}, {v(vT+3)}, vcc")
    a(f"buffer_store_dword {v(vT+2)}, {v(vT+3)}, {s(S_WS,4)}, 0 offen")
    a.label("L_o_noepoch")
    stamp()
    stamp_flush()
    a.label("L_end")
    a("s_endpgm")

    body = a.render()
    head = f"""; fused pre-LN attention (sliding window decode) + GEGLU FFN, one launch, 256 workgroups
; @launch grid=(256,1,1) block=(256,1,1) lds={LDS_SIZE}
.amdgcn_target "amdgcn-amd-amdhsa--gfx950"
.text
.globl {NAME}_kernel
.p2align 8
.type {NAME}_kernel,@function
"""
    tail = f"""
.section .rodata,"a"
.p2align 6
.amdhsa_kernel {NAME}_kernel
  .amdhsa_next_free_vgpr 256
  .amdhsa_next_free_sgpr 100
  .amdhsa_accum_offset 256
  .amdhsa_group_segment_fixed_size 0
  .amdhsa_kernarg_size 96
  .amdhsa_user_sgpr_count 2
  .amdhsa_user_sgpr_kernarg_segment_ptr 1
  .amdhsa_system_sgpr_workgroup_id_x 1
  .amdhsa_float_denorm_mode_32 3
.end_amdhsa_kernel
"""
    return head + body + tail

if __name__ == "__main__":
    cfg = Cfg()
    out = sys.argv[1] if len(sys.argv) > 1 else "cdna_kernels/%s.s" % NAME
    for kv in sys.argv[2:]:
        k, val = kv.split("=")
        cur = getattr(cfg, k)
        setattr(cfg, k, type(cur)(int(val)) if isinstance(cur, (bool, int)) else val)
    open(out, "w").write(gen(cfg))
    print("wrote", out)
```
